```python
import torch

def _softmax(x, axis=-1):
    return torch.softmax(x, dim=axis)
def _gelu(x):
    return torch.nn.functional.gelu(x, approximate="tanh")
def _silu(x):
    return torch.nn.functional.silu(x)
def _sigmoid(x):
    return torch.sigmoid(x)
def _layernorm(x, axis=-1, eps=1e-5):
    m = x.mean(dim=axis, keepdim=True)
    v = x.var(dim=axis, keepdim=True, unbiased=False)
    return (x - m) / torch.sqrt(v + eps)
def _scatter_add(tgt, idx, src, axis=0):
    return tgt.clone().index_add_(axis, idx, src)
def _segment_sum(src, seg, n):
    out = torch.zeros((n,) + src.shape[1:], dtype=src.dtype)
    return out.index_add_(0, seg, src)
def _pad(x, pw):
    flat = tuple(v for pair in reversed(pw) for v in pair)
    return torch.nn.functional.pad(x, flat)

kernel_name = 'recurrent_scan__ssm_conv_s4d__moe_arch_mod__prompt'

def setup_inputs():

    _w = (lambda a: (lambda t: t.to(torch.bfloat16) if t.is_floating_point() else t)(torch.as_tensor(a)))
    def _A_setup():
        Bsz, L, D, N = 1, 2048, 512, 128
        return {
            "u": _w((lambda *s: torch.randn(*s, dtype=torch.bfloat16) * 0.05)(Bsz, L, D)),
            "log_A_real": _w((lambda *s: torch.randn(*s, dtype=torch.bfloat16) * 3.2)(D, N) * 0.5),
            "A_imag": _w((lambda *s: torch.randn(*s, dtype=torch.bfloat16) * 0.05)(D, N) * 3.14),
            "C_real": _w((lambda *s: torch.randn(*s, dtype=torch.bfloat16) * 0.1)(D, N) / N ** 0.5),
            "C_imag": _w((lambda *s: torch.randn(*s, dtype=torch.bfloat16) * 0.1)(D, N) / N ** 0.5),
            "log_dt": _w((lambda *s: torch.randn(*s, dtype=torch.bfloat16) * 0.05)(D) * 0.5 - 4.0),
            "D_skip": _w((lambda *s: torch.randn(*s, dtype=torch.bfloat16) * 0.05)(D)),
        }
    _A_in = _A_setup()

    def _B_setup():
        B, S, D, F, C = 1, 2048, 512, 1376, 2
        return {
            "x": _w((lambda *s: torch.randn(*s, dtype=torch.bfloat16) * 0.05)(B, S, D)),
            "w_r": _w((lambda *s: torch.randn(*s, dtype=torch.bfloat16) * 3.2)(D)),
            "w_gate": _w((lambda *s: torch.randn(*s, dtype=torch.bfloat16) * 0.1)(D, F)),
            "w_up": _w((lambda *s: torch.randn(*s, dtype=torch.bfloat16) * 0.1)(D, F)),
            "w_down": _w((lambda *s: torch.randn(*s, dtype=torch.bfloat16) * 0.1)(F, D)),
        }
    _B_in = _B_setup()

    return {
        "A_u": _A_in["u"],
        "A_log_A_real": _A_in["log_A_real"],
        "A_A_imag": _A_in["A_imag"],
        "A_C_real": _A_in["C_real"],
        "A_C_imag": _A_in["C_imag"],
        "A_log_dt": _A_in["log_dt"],
        "A_D_skip": _A_in["D_skip"],
        "B_x": _B_in["x"],
        "B_w_r": _B_in["w_r"],
        "B_w_gate": _B_in["w_gate"],
        "B_w_up": _B_in["w_up"],
        "B_w_down": _B_in["w_down"],
    }

def reference(A_u, A_log_A_real, A_A_imag, A_C_real, A_C_imag, A_log_dt, A_D_skip, B_x, B_w_r, B_w_gate, B_w_up, B_w_down):
    def _A_ref(u, log_A_real, A_imag, C_real, C_imag, log_dt, D_skip):
        L = u.shape[1]
        dt = torch.exp(log_dt)
        A = -torch.exp(log_A_real) + 1j * A_imag
        C = (C_real + 1j * C_imag) * dt[:, None]
        pos = (lambda x, dt: x.to(dt))(torch.arange(L), log_dt.dtype)
        P = torch.exp((A * dt[:, None])[:, :, None] * pos[None, None, :])
        K = 2.0 * torch.einsum("dn,dnl->dl", C, P).real
        L2 = 2 * L
        u_t = (lambda x, *d: x.permute(*d))(u, 0, 2, 1)
        Kf = (lambda x, *a, **k: torch.fft.rfft(x.float(), *a, **k))(K, L2)
        Uf = (lambda x, *a, **k: torch.fft.rfft(x.float(), *a, **k))(u_t, L2)
        y = (lambda x, *a, **k: torch.fft.irfft(x, *a, **k).to(torch.bfloat16))(Uf * Kf[None, :, :], L2)[:, :, :L]
        y = (lambda x, *d: x.permute(*d))(y, 0, 2, 1)
        return y + u * D_skip[None, None, :]

    def _B_ref(x, w_r, w_gate, w_up, w_down):
        B, S, D = x.shape
        C = 2
        r = x @ w_r
        idx = torch.argsort(-r, axis=-1)[:, :C]
        idx_e = (lambda x, n, axis: torch.repeat_interleave(x, n, dim=axis))(idx.reshape(B, C, 1), D, axis=2)
        x_sel = (lambda x, i, axis: torch.take_along_dim(x, i, dim=axis))(x, idx_e, axis=1)
        g = _silu(x_sel @ w_gate)
        u = x_sel @ w_up
        y = (g * u) @ w_down
        r_sel = _sigmoid((lambda x, i, axis: torch.take_along_dim(x, i, dim=axis))(r, idx, axis=1))
        y = y * r_sel.reshape(B, C, 1)
        b_off = (torch.arange(B) * S).reshape(B, 1)
        flat_idx = (idx + b_off).reshape(B * C)
        zero = (x * 0.0).reshape(B * S, D)
        upd = _scatter_add(zero, flat_idx, y.reshape(B * C, D), axis=0)
        return x + upd.reshape(B, S, D)

    x = A_u
    xn = _layernorm(x, axis=-1)
    s = _A_ref(xn, A_log_A_real, A_A_imag, A_C_real, A_C_imag, A_log_dt, A_D_skip)
    g = _silu(_B_ref(xn, B_w_r, B_w_gate, B_w_up, B_w_down))
    return x + s * g
```

```python
import re

TRANS = ("v_exp_f32", "v_log_f32", "v_rcp_f32", "v_rsq_f32", "v_sqrt_f32", "v_sin_f32", "v_cos_f32")

def regs_of(op):
    op = op.strip()
    op = op.lstrip("-")
    m = re.fullmatch(r"abs\((.*)\)", op) or re.fullmatch(r"\|(.*)\|", op)
    if m: op = m.group(1)
    m = re.fullmatch(r"([vsa])(\d+)", op)
    if m: return {(m.group(1), int(m.group(2)))}
    m = re.fullmatch(r"([vsa])\[(\d+):(\d+)\]", op)
    if m: return {(m.group(1), i) for i in range(int(m.group(2)), int(m.group(3)) + 1)}
    if op in ("vcc", "vcc_lo", "vcc_hi"): return {("x", "vcc")}
    if op in ("exec", "exec_lo", "exec_hi"): return {("x", "exec")}
    if op == "m0": return {("x", "m0")}
    return set()

def split_ops(s):
    out, depth, cur = [], 0, ""
    for ch in s:
        if ch in "[(": depth += 1
        if ch in "])": depth -= 1
        if ch == "," and depth == 0: out.append(cur.strip()); cur = ""
        else: cur += ch
    if cur.strip(): out.append(cur.strip())
    return out

class Ins:
    def __init__(self, text):
        self.text = text
        t = text.split(";")[0].strip()
        parts = t.split(None, 1)
        self.mn = mn = parts[0]
        rest = parts[1] if len(parts) > 1 else ""
        ops = split_ops(rest)
        self.mods = ""
        if ops:
            l = ops[-1].split(None, 1)
            ops[-1] = l[0]
            self.mods = l[1] if len(l) > 1 else ""
        self.ops = ops
        self.valu = mn.startswith("v_") and not mn.startswith("v_mfma")
        self.mfma = mn.startswith("v_mfma")
        self.trans = any(mn.startswith(x) for x in TRANS)
        self.dot = mn.startswith("v_dot")
        self.dpp = "_dpp" in mn or "row_" in self.mods or "quad_perm" in self.mods or "wave_" in self.mods
        self.permlane = mn.startswith("v_permlane")
        self.rdlane = mn.startswith(("v_readlane", "v_readfirstlane"))
        self.wrlane = mn.startswith("v_writelane")
        self.ds = mn.startswith("ds_")
        self.vmem = mn.startswith(("global_", "buffer_", "flat_"))
        self.salu = mn.startswith("s_")
        R = [regs_of(o) for o in ops]
        wr, rd = set(), set()
        if self.valu or self.mfma:
            if mn in ("v_nop",): pass
            elif self.permlane:
                wr = R[0] | R[1]; rd = R[0] | R[1]
            else:
                wr = set(R[0]); srcs = R[1:]
                if mn.startswith(("v_add_co", "v_sub_co", "v_addc_co", "v_subb_co", "v_subrev_co", "v_mad_u64")):
                    wr |= R[1]; srcs = R[2:]
                for r in srcs: rd |= r
                if mn.startswith(("v_fmac", "v_dot2c", "v_pk_fmac")) or self.dpp or self.wrlane: rd |= R[0]
                if mn.startswith("v_cmpx"): wr |= {("x", "exec")}
                if mn.startswith("v_cndmask") and len(ops) == 3: rd |= {("x", "vcc")}
        elif self.ds:
            if mn.startswith(("ds_read", "ds_bpermute", "ds_permute", "ds_swizzle")) or "_rtn" in mn:
                wr = set(R[0]);
                for r in R[1:]: rd |= r
            else:
                for r in R: rd |= r
        elif self.vmem:
            isload = "_load" in mn and "lds" not in mn and " lds" not in (" " + self.mods)
            if isload:
                wr = set(R[0])
                for r in R[1:]: rd |= r
            else:
                for r in R: rd |= r
        elif self.salu:
            if mn.startswith(("s_cmp", "s_cbranch", "s_branch", "s_waitcnt", "s_nop", "s_barrier", "s_endpgm", "s_sleep", "s_setprio", "s_bitcmp")):
                for r in R: rd |= r
            else:
                if R: wr = set(R[0])
                for r in R[1:]: rd |= r
        self.wr, self.rd = wr, rd
        self.R = R
        if self.mfma:
            self.passes = 8 if "32x32" in mn else 4
        self.widestore = (self.vmem and ("store_dwordx4" in mn or "store_dwordx3" in mn))
        if self.widestore:
            self.sdata = R[1] if mn.startswith("global_") else R[0]

def need(p, c):
    n = 0
    vw = {r for r in p.wr if r[0] in "va"}
    sw = {r for r in p.wr if r[0] == "s" or r == ("x", "vcc")}
    if p.valu:
        if c.dpp and (vw & c.rd): n = max(n, 2)
        if c.rdlane and (vw & c.rd): n = max(n, 1)
        if c.permlane and (vw & c.rd): n = max(n, 2)
        if c.mfma and (vw & c.rd): n = max(n, 2)
        if p.trans and c.valu and not c.trans and (vw & c.rd): n = max(n, 1)
        if p.trans and (c.ds or c.vmem) and (vw & c.rd): n = max(n, 1)
        if p.dot and (vw & (c.rd | c.wr)):
            same = c.mn == p.mn
            if same and len(c.R) >= 4 and not (vw & (c.R[1] | c.R[2])): pass
            else: n = max(n, 3)
        if sw:
            if c.valu and (sw & c.rd):
                n = max(n, 4 if (c.rdlane or c.wrlane) else 2)
            if c.vmem and (sw & c.rd): n = max(n, 5)
            if c.salu and (sw & c.rd): n = max(n, 1)
            if c.mn.startswith("s_cbranch_vcc") and ("x", "vcc") in sw: n = max(n, 1)
        if ("x", "exec") in p.wr:
            if c.dpp: n = max(n, 5)
            if c.rdlane or c.wrlane or c.permlane or c.mfma: n = max(n, 4)
    if p.mfma:
        P = p.passes
        if c.mfma:
            if vw & (c.R[1] | c.R[2]): n = max(n, {4: 8, 8: 12}[P])
            if vw & c.R[3]:
                if c.R[3] == p.wr and c.passes == P: pass
                else: n = max(n, {4: 6, 8: 10}[P])
            elif vw & c.wr: n = max(n, {4: 8, 8: 12}[P])
        elif (c.valu or c.ds or c.vmem) and (vw & (c.rd | c.wr)): n = max(n, {4: 8, 8: 12}[P])
        if c.valu and (p.R[3] & c.wr): n = max(n, {4: 3, 8: 7}[P])
    if p.widestore and (p.sdata & c.wr): n = max(n, 2)
    if p.salu and ("x", "m0") in p.wr and (c.vmem and "lds" in c.text or "addtid" in c.mn): n = max(n, 1)
    return n

class Asm:
    def __init__(self):
        self.lines = []
        self.hist = []
        self.nins = 0
    def raw(self, t):
        self.lines.append(t)
    def label(self, name):
        self.lines.append(name + ":")
    def flush(self, n=0):
        self.hist = []
    def I(self, text):
        c = Ins(text)
        req = 0
        for p, dist in self.hist:
            k = need(p, c) - dist
            if k > req: req = k
        while req > 0:
            k = min(req, 16)
            self.lines.append(f"    s_nop {k-1}")
            self._adv(k); req -= k
        self.lines.append("    " + text)
        st = 1
        if c.mn == "s_nop": st = int(c.ops[0], 0) + 1
        self._adv(st)
        self.hist.append([c, 0])
        self.nins += 1
    def _adv(self, k):
        for h in self.hist: h[1] += k
        self.hist = [h for h in self.hist if h[1] < 24]
    def __call__(self, text):
        for l in text.strip().split("\n"):
            l = l.strip()
            if not l or l.startswith(";"): continue
            if l.endswith(":"): self.label(l[:-1])
            else: self.I(l)
    def text(self):
        return "\n".join(self.lines) + "\n"
```

```python
import sys, struct
from asmlib import Asm

NAME = "recurrent_scan__ssm_conv_s4d__moe_arch_mod__prompt"
STAMPS = "--stamps" in sys.argv
OUT = [a for a in sys.argv[1:] if not a.startswith("--")]
OUT = OUT[0] if OUT else f"cdna_kernels/{NAME}.s"

def fb(x): return "0x%08x" % struct.unpack("<I", struct.pack("<f", x))[0]
LOG2E = 1.4426950408889634
INV2PI = 0.15915494309189535

ROWB = 544
TBS = 64 * ROWB
YPT = 1280
YPW = 8 * YPT
CB = 2 * TBS
CPS = 4160
UB = CB + 8 * CPS
UBS = 4608
MISC = UB + 2 * UBS
FLAGS = MISC
KEYS = MISC + 32
FSYNC = MISC + 64
DUMP = MISC + 128
RED = MISC + 768
LDS_TOTAL = MISC + 768 + 1024
WS_STATS = 4096
WS_FFN = 65536
WS_STAMP = 8 << 20
POLL_MAX = 20000

a = Asm()
nst = [0]
def stamp(k):
    if STAMPS:
        a(f"s_memrealtime s[{64+2*k}:{65+2*k}]\n s_waitcnt lgkmcnt(0)")

ROW = {}
for t in range(8): ROW[(t, 0)] = t; ROW[(t, 8)] = 8 + t
YROW = 16
for t in range(8): ROW[(t, 16)] = 32 + t
for t in range(4): ROW[(t, 4)] = 40 + t; ROW[(t, 12)] = 44 + t
for i, e in enumerate(range(1, 16, 2)): ROW[(0, e)] = 48 + i
for i, e in enumerate((2, 6, 10, 14)): ROW[(0, e)] = 56 + i; ROW[(1, e)] = 60 + i
def rnd(tau, x):
    sh = [0, 1, 2, 2, 3, 3, 3, 3][tau]
    if sh == 0: return x
    q = x >> sh; rem = x & ((1 << sh) - 1); half = 1 << (sh - 1)
    if rem > half or (rem == half and (q & 1)): q += 1
    return q << sh

def P(r): return f"v[{r}:{r+1}]"
def Q(r): return f"v[{r}:{r+3}]"

def cmul2(dst, src, w, tmp):
    for k in (0, 2):
        a(f"v_pk_mul_f32 {P(tmp+k)}, {P(src+k)}, {P(w+k)} op_sel:[0,0] op_sel_hi:[1,0]")
    for k in (0, 2):
        a(f"v_pk_fma_f32 {P(dst+k)}, {P(src+k)}, {P(w+k)}, {P(tmp+k)} op_sel:[1,1,0] op_sel_hi:[0,1,1] neg_lo:[1,0,0]")

pkflip = [0]
def wrow(src, row, vaddr=48):
    pk = 44 + 2 * (pkflip[0] & 1); pkflip[0] += 1
    a(f"v_cvt_pk_bf16_f32 v{pk}, v{src}, v{src+1}")
    a(f"v_cvt_pk_bf16_f32 v{pk+1}, v{src+2}, v{src+3}")
    a(f"ds_write_b64 v{vaddr}, {P(pk)} offset:{row*ROWB}")

def reduce32(regs, fill):
    fill = list(fill)
    def F(n):
        for _ in range(n):
            if fill: a(fill.pop(0))
    for sh in (8, 4, 2, 1):
        for r in regs:
            a(f"v_add_f32_dpp v{r}, v{r}, v{r} row_ror:{sh} row_mask:0xf bank_mask:0xf")
        F(max(0, 3 - len(regs)))
    for r in regs: a(f"v_mov_b32 v{r+1}, v{r}")
    F(2)
    for r in regs: a(f"v_permlane16_swap_b32 v{r}, v{r+1}")
    F(1)
    for r in regs: a(f"v_add_f32 v{r}, v{r}, v{r+1}")
    F(100)

a.raw(open(f"cdna_kernels/{NAME}.s.ref").read().split("; @launch")[0].rstrip())
a.raw(f"; @launch grid=(256,1,1) block=(512,1,1) lds={LDS_TOTAL}")
a.raw(f""".amdgcn_target "amdgcn-amd-amdhsa--gfx950"
.text
.globl {NAME}_kernel
.p2align 8
.type {NAME}_kernel,@function
{NAME}_kernel:""")
a(f"""
s_cmp_ge_u32 s2, 256
s_cbranch_scc1 L_end
s_load_dwordx16 s[16:31], s[0:1], 0
s_load_dwordx8 s[32:39], s[0:1], 64
s_load_dwordx4 s[40:43], s[0:1], 96
s_load_dwordx2 s[44:45], s[0:1], 112
s_getpc_b64 s[12:13]
L_pc:
v_lshlrev_b32 v2, 7, v0
v_min_u32 v2, L_codeend-L_pc-4, v2
global_load_dword v3, v2, s[12:13]
v_and_b32 v1, 63, v0
v_lshrrev_b32 v5, 6, v0
v_readfirstlane_b32 s3, v5
s_and_b32 s4, s2, 7
s_lshr_b32 s5, s2, 3
s_lshl_b32 s6, s4, 5
s_add_u32 s6, s6, s5
s_and_b32 s14, s3, 1
s_lshr_b32 s15, s3, 1
""")
if STAMPS: a("s_memrealtime s[64:65]")
a(f"""
v_and_b32 v6, 15, v1
v_lshlrev_b32 v7, 2, v6
s_lshl_b32 s11, s15, 6
s_add_u32 s11, s11, L_rowtab-L_pc
v_add_u32 v7, s11, v7
global_load_dword v126, v7, s[12:13]
""")
a(f"""
v_mov_b32 v8, 0
v_mov_b32 v9, 0
v_mov_b32 v10, 0
v_mov_b32 v11, 0
v_lshrrev_b32 v12, 5, v1
v_mul_u32_u24 v12, {UBS}, v12
v_and_b32 v13, 31, v1
v_lshl_add_u32 v12, v13, 4, v12
v_add_u32 v12, {UB+4096}, v12
ds_write_b128 v12, v[8:11]
v_lshrrev_b32 v12, 1, v1
v_mul_u32_u24 v12, {CPS}, v12
v_and_b32 v13, 1, v1
v_lshl_add_u32 v12, v13, 4, v12
v_add_u32 v12, {CB}, v12
v_lshlrev_b32 v13, 4, v1
v_add_u32 v13, {MISC-256}, v13
v_cmp_gt_u32 vcc, 16, v1
v_cndmask_b32 v12, v13, v12, vcc
ds_write_b128 v12, v[8:11]
""")
a(f"""
s_lshl_b32 s11, s6, 1
s_add_u32 s11, s11, s14
s_lshl_b32 s11, s11, 8
v_lshl_add_u32 v14, v1, 2, s11
s_lshl_b32 s46, s2, 3
s_sub_u32 s47, s3, 4
s_lshl_b32 s11, s47, 1
s_add_u32 s46, s46, s11
s_lshl_b32 s46, s46, 10
v_and_b32 v13, 31, v1
v_lshlrev_b32 v13, 4, v13
v_lshrrev_b32 v15, 5, v1
v_lshl_add_u32 v15, v15, 10, v13
v_add_u32 v15, s46, v15
s_lshl_b32 s11, s6, 2
s_cmp_lt_u32 s3, 4
s_waitcnt lgkmcnt(0)
s_load_dword s8, s[26:27], s11
s_load_dword s9, s[28:29], s11
s_load_dword s10, s[44:45], 0
s_cbranch_scc1 L_noln0
global_load_dwordx4 v[16:19], v15, s[16:17]
global_load_dwordx4 v[20:23], v15, s[16:17] offset:512
global_load_dwordx4 v[24:27], v13, s[32:33]
global_load_dwordx4 v[28:31], v13, s[32:33] offset:512
L_noln0:
global_load_dword v4, v14, s[18:19]
global_load_dword v5, v14, s[20:21]
global_load_dword v6, v14, s[22:23]
global_load_dword v7, v14, s[24:25]
s_mov_b32 s48, s40
s_and_b32 s49, s41, 0xffff
s_mov_b32 s50, 0x200000
s_mov_b32 s51, 0x20000
s_mov_b32 s56, 0xffff0000
s_mov_b32 s57, 0xffff
s_cmp_lt_u32 s3, 4
s_cbranch_scc1 L_tables
""")
a(f"""
s_mov_b32 s46, 0x3f803f80
s_lshl_b32 s11, s2, 2
s_add_u32 s11, s11, s47
s_lshl_b32 s11, s11, 4
s_add_u32 s11, s11, {WS_STATS}
v_mov_b32 v12, s11
s_waitcnt vmcnt(6)
""")
for i in range(8):
    acc = 48 + 2 * (i & 1)
    a(f"v_dot2_f32_bf16 v{acc}, v{16+i}, s46, {'0' if i < 2 else 'v%d' % acc}")
unp = []
for i in range(8):
    unp.append(f"v_lshlrev_b32 v{32+2*i}, 16, v{16+i}")
    unp.append(f"v_and_b32 v{33+2*i}, s56, v{16+i}")
for _ in range(3): a(unp.pop(0))
a("v_add_f32 v48, v48, v50")
a(unp.pop(0)); a(unp.pop(0))
reduce32([48], unp)
a(f"""
v_mul_f32 v50, {fb(1/512)}, v48
v_cvt_pk_bf16_f32 v54, v50, v50
v_mov_b32 v56, 0
v_mov_b32 v57, 0
v_and_b32 v52, s56, v54
s_waitcnt vmcnt(4)
""")
for i in range(8):
    t0 = 58 + 0; t1 = 60
    a(f"v_pk_add_f32 {P(58)}, {P(32+2*i)}, {P(52)} op_sel_hi:[1,0] neg_lo:[0,1] neg_hi:[0,1]")
    a(f"v_pk_add_f32 {P(32+2*i)}, {P(32+2*i)}, {P(50)} op_sel_hi:[1,0] neg_lo:[0,1] neg_hi:[0,1]")
    a(f"v_cvt_pk_bf16_f32 v{60+(i&1)}, v58, v59")
    a(f"v_pk_fma_f32 {P(56)}, {P(32+2*i)}, {P(32+2*i)}, {P(56)}")
    a(f"v_dot2_f32_bf16 v62, v{60+(i&1)}, v{24+i}, {'0' if i == 0 else 'v62'}")
a("v_add_f32 v56, v56, v57")
reduce32([56, 62], [])
a(f"""
v_mul_f32 v56, {fb(1/512)}, v56
v_cvt_pk_bf16_f32 v56, v56, v56
v_and_b32 v56, s56, v56
v_add_f32 v56, {fb(1e-5)}, v56
v_cvt_pk_bf16_f32 v56, v56, v56
v_and_b32 v56, s56, v56
v_sqrt_f32 v56, v56
v_cvt_pk_bf16_f32 v56, v56, v56
v_and_b32 v56, s56, v56
v_rcp_f32 v57, v56
v_and_or_b32 v8, v54, s57, v56
v_mul_f32 v62, v62, v57
v_cvt_pk_bf16_f32 v62, v62, v62
v_readlane_b32 s58, v8, 32
v_ashrrev_i32 v63, 31, v62
v_or_b32 v63, 0x80000000, v63
v_xor_b32 v62, v62, v63
v_lshrrev_b32 v62, 16, v62
v_mov_b32 v9, s58
v_readlane_b32 s59, v62, 32
s_waitcnt lgkmcnt(0)
s_add_u32 s7, s10, 0x9E3779B9
s_lshl_b32 s59, s59, 16
v_mov_b32 v11, s7
v_or_b32 v10, s59, v62
s_mov_b64 exec, 1
global_store_dwordx4 v12, v[8:11], s[44:45] sc1
s_mov_b64 exec, -1
""")
stamp(1)
a(f"""
s_waitcnt vmcnt(1)
s_lshl_b32 s11, s47, 18
s_lshl_b32 s58, s6, 2
s_add_u32 s11, s11, s58
v_lshl_add_u32 v124, v1, 12, s11
v_add_u32 v125, 0x100000, v124
""")
for j in range(4): a(f"global_load_dword v{128+j}, v124, s[16:17] offset:{1024*j}")
for j in range(4): a(f"global_load_dword v{132+j}, v125, s[16:17] offset:{1024*j}")
a(f"""
s_mul_i32 s60, s4, 11
s_add_u32 s60, s60, s5
s_cmp_lt_u32 s5, 11
s_cselect_b32 s61, 1, 0
s_cmp_lt_u32 s60, 86
s_cselect_b32 s61, s61, 0
s_cmp_eq_u32 s61, 0
s_cbranch_scc1 L_tables
v_lshrrev_b32 v16, 4, v1
v_lshlrev_b32 v16, 3, v16
s_lshl_b32 s11, s47, 7
s_add_u32 s11, s11, 1
v_add_u32 v16, s11, v16
v_mul_u32_u24 v16, 2752, v16
v_and_b32 v17, 7, v1
v_lshl_add_u32 v16, v17, 2, v16
s_lshl_b32 s11, s60, 5
v_add_u32 v16, s11, v16
v_mov_b32 v17, 0
v_mov_b32 v18, s34
v_mov_b32 v19, s35
v_mov_b32 v20, s36
v_mov_b32 v21, s37
v_and_b32 v22, 8, v1
v_cmp_ne_u32 vcc, 0, v22
v_cndmask_b32 v18, v18, v20, vcc
v_cndmask_b32 v19, v19, v21, vcc
v_lshl_add_u64 v[18:19], v[16:17], 0, v[18:19]
s_mov_b32 s52, {3*2752}
s_mov_b32 s53, 0
s_mov_b32 s54, {26*2752}
s_mov_b32 s55, 0
""")
for s in range(4):
    for grp in range(3):
        for k in range(3):
            i = 3 * grp + k
            if i < 8: a(f"global_load_dword v{136+8*s+i}, v[18:19], off offset:{(k-1)*2752}")
        if not (s == 3 and grp == 2):
            a(f"v_lshl_add_u64 v[18:19], v[18:19], 0, {'s[52:53]' if grp < 2 else 's[54:55]'}")
a(f"""
s_lshl_b32 s11, s60, 14
s_lshl_b32 s58, s47, 8
s_add_u32 s11, s11, s58
v_lshl_add_u32 v16, v1, 2, s11
""")
for c in range(16):
    if c and c % 4 == 0: a("v_add_u32 v16, 4096, v16")
    a(f"global_load_dword v{200+c}, v16, s[38:39] offset:{1024*(c%4)}")
a("s_branch L_tables2")
a.flush()
a(f"""
L_tables:
s_cmp_lt_u32 s3, 4
s_cbranch_scc0 L_tables2
s_waitcnt vmcnt(0) lgkmcnt(0)
s_add_u32 s7, s10, 0x9E3779B9
L_tables2:
""")

a(f"""
s_lshl_b32 s11, s14, 4
s_lshr_b32 s58, s8, s11
s_lshl_b32 s58, s58, 16
v_mov_b32 v16, {fb(LOG2E)}
v_mul_f32 v17, s58, v16
v_lshlrev_b32 v18, 16, v4
v_and_b32 v19, s56, v4
v_exp_f32 v17, v17
v_mul_f32 v18, v18, v16
v_mul_f32 v19, v19, v16
v_exp_f32 v18, v18
v_exp_f32 v19, v19
s_mov_b32 s58, {fb(INV2PI)}
s_mov_b32 s63, {fb(256.0)}
s_mov_b32 s62, 4.0
s_cmp_eq_u32 s15, 1
s_cselect_b32 s62, 1.0, s62
s_cmp_eq_u32 s15, 2
s_cselect_b32 s62, {fb(8.0)}, s62
s_cmp_eq_u32 s15, 3
s_cselect_b32 s62, {fb(128.0)}, s62
s_cselect_b32 s63, {fb(16.0)}, s63
s_cselect_b32 s58, {fb(-INV2PI)}, s58
v_cvt_pk_bf16_f32 v17, v17, v17
v_and_b32 v17, s56, v17
v_cvt_pk_bf16_f32 v18, v18, v19
v_and_b32 v19, s56, v18
v_lshlrev_b32 v18, 16, v18
v_mul_f32 v8, v18, v17
v_mul_f32 v9, v19, v17
v_lshlrev_b32 v10, 16, v5
v_and_b32 v11, s56, v5
v_mul_f32 v8, {fb(-LOG2E)}, v8
v_mul_f32 v9, {fb(-LOG2E)}, v9
v_mul_f32 v10, v10, v17
v_mul_f32 v11, v11, v17
v_mul_f32 v10, s58, v10
v_mul_f32 v11, s58, v11
v_add_f32 v17, v17, v17
v_lshlrev_b32 v12, 16, v6
v_lshlrev_b32 v13, 16, v7
v_and_b32 v14, s56, v6
v_and_b32 v15, s56, v7
v_mul_f32 v12, v12, v17
v_mul_f32 v13, v13, v17
v_mul_f32 v14, v14, v17
v_mul_f32 v15, v15, v17
""")
for (dst, sp, t) in ((16, "s62", 28), (20, "s63", 36)):
    a(f"""
v_mul_f32 v{t}, {sp}, v8
v_mul_f32 v{t+1}, {sp}, v9
v_mul_f32 v{t+2}, {sp}, v10
v_mul_f32 v{t+3}, {sp}, v11
v_exp_f32 v{t}, v{t}
v_exp_f32 v{t+1}, v{t+1}
v_fract_f32 v{t+2}, v{t+2}
v_fract_f32 v{t+3}, v{t+3}
v_cos_f32 v{dst}, v{t+2}
v_sin_f32 v{dst+1}, v{t+2}
v_cos_f32 v{dst+2}, v{t+3}
v_sin_f32 v{dst+3}, v{t+3}
""")
for (dst, t) in ((16, 28), (20, 36)):
    a(f"""
v_mul_f32 v{dst}, v{dst}, v{t}
v_mul_f32 v{dst+1}, v{dst+1}, v{t}
v_mul_f32 v{dst+2}, v{dst+2}, v{t+1}
v_mul_f32 v{dst+3}, v{dst+3}, v{t+1}
""")
a(f"""
s_mul_i32 s11, s14, {TBS}
v_lshl_add_u32 v48, v1, 3, s11
s_cmp_eq_u32 s15, 0
s_cbranch_scc1 L_roleB
s_cmp_eq_u32 s15, 1
s_cbranch_scc1 L_roleC
s_cmp_eq_u32 s15, 2
s_cbranch_scc1 L_roleA
v_mov_b32 v12, 1.0
v_mov_b32 v13, 0
v_mov_b32 v14, 1.0
v_mov_b32 v15, 0
v_add_u32 v48, {YROW*ROWB}, v48
L_roleA:
""")
S, WA, WW, WC, C1, C2, C3, T1, T2 = 12, 16, 20, 24, 28, 32, 36, 40, 52
cmul2(C1, S, WA, T1)
for i in range(8):
    wrow(S, i); wrow(C1, 8 + i)
    if i < 7:
        cmul2(S, S, WW, T1); cmul2(C1, C1, WW, T2)
a("s_branch L_tabdone")
a.flush()
a("L_roleB:")
cmul2(WC, WA, WA, T1)
cmul2(C1, S, WA, T2)
cmul2(C2, C1, WC, T1)
cmul2(C3, C2, WA, T2)
for i in range(8):
    if i < 4: wrow(C1, ROW[(i, 4)]); wrow(C2, ROW[(i, 12)])
    if i > 0: wrow(C3, ROW[(i, 16)])
    if i < 3: cmul2(C1, C1, WW, T1); cmul2(C2, C2, WW, T2)
    if i < 7: cmul2(C3, C3, WW, T1)
a("s_branch L_tabdone")
a.flush()
a("L_roleC:")
cmul2(WC, WA, WA, T1)
cmul2(C1, S, WA, T2)
for e in range(1, 16, 2):
    wrow(C1, ROW[(0, e)])
    if e % 4 == 1:
        cmul2(C2, C1, WA, T2)
    if e < 15: cmul2(C1, C1, WC, T1)
    if e % 4 == 1:
        cmul2(C3, C2, WW, T2)
        wrow(C2, ROW[(0, e + 1)]); wrow(C3, ROW[(1, e + 1)])
a.flush()
a("L_tabdone:")
a(f"""
s_mul_i32 s11, s14, {TBS}
v_lshrrev_b32 v12, 4, v1
v_lshl_add_u32 v13, v12, 4, s11
v_and_b32 v8, s57, v126
v_lshrrev_b32 v9, 16, v126
v_add_u32 v8, v8, v13
v_add_u32 v9, v9, v13
v_and_b32 v14, 15, v1
v_mul_u32_u24 v10, {ROWB}, v14
v_add_u32 v10, v10, v13
s_mul_i32 s58, s14, {4*CPS}
s_lshl_b32 s59, s15, 9
s_add_u32 s58, s58, s59
s_add_u32 s58, s58, {CB+32-8}
v_lshlrev_b32 v11, 5, v14
v_lshl_add_u32 v11, v12, 3, v11
v_add_u32 v11, s58, v11
s_waitcnt lgkmcnt(0)
s_barrier
""")
stamp(2)
def gemm_reads(s):
    a(f"ds_read_b128 {Q(16+12*s)}, v10 offset:{YROW*ROWB+64*s}")
    a(f"ds_read_b128 {Q(20+12*s)}, v8 offset:{64*s}")
    a(f"ds_read_b128 {Q(24+12*s)}, v9 offset:{64*s}")
for s in range(4): gemm_reads(s)
for s in range(8):
    if s + 4 < 8:
        gemm_reads(s + 4); a("s_waitcnt lgkmcnt(12)")
    else:
        a(f"s_waitcnt lgkmcnt({3*(7-s)})")
    c1 = "0" if s == 0 else Q(112); c2 = "0" if s == 0 else Q(116)
    a(f"v_mfma_f32_16x16x32_bf16 {Q(112)}, {Q(20+12*s)}, {Q(16+12*s)}, {c1}")
    a(f"v_mfma_f32_16x16x32_bf16 {Q(116)}, {Q(24+12*s)}, {Q(16+12*s)}, {c2}")
for k, D in enumerate((112, 116)):
    o = 8 + 2048 * k
    t = 16 + 4 * k
    a(f"""
v_cvt_pk_bf16_f32 v{t}, v{D}, v{D+1}
v_cvt_pk_bf16_f32 v{t+1}, v{D+2}, v{D+3}
v_cvt_pk_bf16_f32 v{t+2}, v{D+1}, v{D+2}
ds_write_b64 v11, {P(t)} offset:{o}
ds_write_b32 v11, v{t} offset:{o+2*CPS-4}
ds_write_b32 v11, v{t+1} offset:{o+2*CPS}
ds_write_b16 v11, v{t} offset:{o+CPS-2}
ds_write_b32 v11, v{t+2} offset:{o+CPS}
ds_write_b16_d16_hi v11, v{t+1} offset:{o+CPS+4}
ds_write_b16 v11, v{t} offset:{o+3*CPS-6}
ds_write_b32 v11, v{t+2} offset:{o+3*CPS-4}
ds_write_b16_d16_hi v11, v{t+1} offset:{o+3*CPS}
""")
a(f"""
s_waitcnt lgkmcnt(0)
s_barrier
""")
stamp(3)
a(f"""
s_cmp_lt_u32 s3, 4
s_cbranch_scc0 L_helper
""")
a(f"""
v_and_b32 v8, 15, v1
v_add_u32 v9, 1, v8
v_and_b32 v10, 3, v9
v_sub_u32 v9, v9, v10
v_mul_u32_u24 v10, {CPS}, v10
v_lshrrev_b32 v12, 4, v1
v_lshl_add_u32 v9, v12, 3, v9
v_lshl_add_u32 v10, v9, 1, v10
s_mul_i32 s58, s14, {4*CPS}
s_lshl_b32 s59, s15, 6
s_add_u32 s58, s58, s59
s_add_u32 s58, s58, {CB}
v_add_u32 v10, s58, v10
""")
for i in range(32):
    a(f"ds_read_b64 {P(128+4*i)}, v10 offset:{128*i}")
    a(f"ds_read_b64 {P(130+4*i)}, v10 offset:{128*i+8}")
a(f"""
s_mul_i32 s58, s14, {UBS}
s_add_u32 s58, s58, s59
s_add_u32 s58, s58, {UB+4064-3584}
v_lshlrev_b32 v11, 4, v12
v_lshlrev_b32 v9, 5, v8
v_sub_u32 v11, v11, v9
v_add_u32 v11, s58, v11
v_mul_u32_u24 v13, 20, v12
v_add_u32 v13, v13, v8
s_mul_i32 s58, s3, {YPW}
v_lshl_add_u32 v13, v13, 4, s58
s_lshl_b32 s58, s3, 2
s_add_u32 s58, s58, {FLAGS}
v_lshlrev_b32 v14, 2, v1
v_add_u32 v14, {DUMP}, v14
v_mov_b32 v9, s58
v_cmp_eq_u32 vcc, 0, v1
v_cndmask_b32 v14, v14, v9, vcc
v_lshlrev_b32 v15, 4, v0
v_add_u32 v15, {WS_STATS}, v15
v_add_u32 v9, 8192, v15
s_mov_b32 s11, 0
L_cpoll:
global_load_dwordx4 v[16:19], v15, s[44:45] sc1
global_load_dwordx4 v[20:23], v9, s[44:45] offset:-4096 sc1
global_load_dwordx4 v[24:27], v9, s[44:45] sc1
v_add_u32 v32, 12288, v15
global_load_dwordx4 v[28:31], v32, s[44:45] sc1
s_add_u32 s11, s11, 1
s_waitcnt vmcnt(0)
v_xor_b32 v32, s7, v19
v_xor_b32 v33, s7, v23
v_xor_b32 v34, s7, v27
v_xor_b32 v35, s7, v31
v_or_b32 v32, v32, v33
v_or3_b32 v32, v32, v34, v35
v_cmp_ne_u32 vcc, 0, v32
s_cmp_gt_u32 s11, {POLL_MAX}
s_cbranch_scc1 L_cpoll_done
s_cbranch_vccnz L_cpoll
L_cpoll_done:
""")
stamp(4)
a(f"""
v_lshlrev_b32 v32, 1, v0
v_sub_u32 v32, 2047, v32
""")
for k in range(4):
    g = 18 + 4 * k
    a(f"v_subrev_u32 v33, {512*k}, v32" if k else "v_mov_b32 v33, v32")
    a(f"v_lshl_or_b32 v{36+2*k}, v{g}, 16, v33")
    a(f"v_subrev_u32 v33, 1, v33")
    a(f"v_and_or_b32 v{37+2*k}, v{g}, s56, v33")
a("v_max_u32 v44, v36, v37\n v_min_u32 v45, v36, v37")
for r in range(38, 44):
    a(f"v_med3_u32 v45, v44, v45, v{r}\n v_max_u32 v44, v44, v{r}")
def merge_dpp(ctrl):
    a(f"""
v_mov_b32_dpp v46, v44 {ctrl} row_mask:0xf bank_mask:0xf
v_mov_b32_dpp v47, v45 {ctrl} row_mask:0xf bank_mask:0xf
v_min_u32 v48, v44, v46
v_max_u32 v44, v44, v46
v_max3_u32 v45, v45, v47, v48
""")
for sh in (8, 4, 2, 1): merge_dpp(f"row_ror:{sh}")
for sw in ("v_permlane16_swap_b32", "v_permlane32_swap_b32"):
    a(f"""
v_mov_b32 v46, v44
v_mov_b32 v47, v45
{sw} v44, v46
{sw} v45, v47
v_min_u32 v48, v44, v46
v_max_u32 v44, v44, v46
v_max3_u32 v45, v45, v47, v48
""")
a(f"""
s_lshl_b32 s58, s3, 3
s_add_u32 s58, s58, {KEYS}
v_mov_b32 v46, s58
s_mov_b64 exec, 1
ds_write_b64 v46, {P(44)}
s_mov_b64 exec, -1
s_cmp_lg_u32 s2, 0
s_cbranch_scc1 L_noepoch
""")
a(f"""
L_noepoch:
s_waitcnt lgkmcnt(0)
s_barrier
""")
stamp(5)
ms = list(range(-6, 57, 2))
def uread(idx):
    a(f"ds_read_b128 {Q(32+4*(idx%16))}, v11 offset:{64*(56-ms[idx])}")
PRE = 8
for i in range(PRE): uread(i)
a("v_mov_b32 v8, 0")
outstanding = []
for i in range(PRE): outstanding.append(("u", i))
started = set()
pend = []
for i, m in enumerate(ms):
    pos = [k for k, o in enumerate(outstanding) if o == ("u", i)][0]
    left = len(outstanding) - pos - 1
    a(f"s_waitcnt lgkmcnt({min(left, 15)})")
    outstanding = outstanding[pos + 1:]
    cmin = max(0, -(-m // 8))
    cs = list(range(cmin, 8))
    for n, c in enumerate(cs):
        ti = 4 * c - m // 2
        acc = Q(96 + 4 * c)
        a(f"v_mfma_f32_16x16x32_bf16 {acc}, {Q(128+4*ti)}, {Q(32+4*(i%16))}, {acc if c in started else '0'}")
        started.add(c)
        if n == 0 and i + PRE < len(ms):
            uread(i + PRE); outstanding.append(("u", i + PRE))
        if n == min(2, len(cs) - 1) and pend:
            pc = pend.pop(0)
            a(f"v_add_u32 v8, 1, v8")
            a(f"ds_write_b128 v13, {Q(96+4*pc)} offset:{YPT*pc}")
            a(f"ds_write_b32 v14, v8")
            outstanding += [("w", pc), ("f", pc)]
    if m % 8 == 0 and m >= 0:
        pend.append(m // 8)
for pc in pend:
    a(f"v_add_u32 v8, 1, v8")
    a(f"ds_write_b128 v13, {Q(96+4*pc)} offset:{YPT*pc}")
    a(f"ds_write_b32 v14, v8")
stamp(6)
a(f"""
s_cmp_lg_u32 s3, 0
s_cbranch_scc1 L_fin
""")
def read_top2(t):
    a(f"""
v_mov_b32 v{t+2}, {KEYS}
ds_read_b128 {Q(t+4)}, v{t+2}
ds_read_b128 {Q(t+8)}, v{t+2} offset:16
s_waitcnt lgkmcnt(0)
v_mov_b32 v{t}, v{t+4}
v_mov_b32 v{t+1}, v{t+5}
""")
    for k in (6, 8, 10):
        a(f"""
v_min_u32 v{t+2}, v{t}, v{t+k}
v_max_u32 v{t}, v{t}, v{t+k}
v_max3_u32 v{t+1}, v{t+1}, v{t+k+1}, v{t+2}
""")
read_top2(16)
a(f"""
s_cmp_lg_u32 s2, 0
s_cbranch_scc1 L_noep2
v_mov_b32 v30, 0
v_mov_b32 v31, s7
s_mov_b64 exec, 1
global_store_dword v30, v31, s[44:45]
s_mov_b64 exec, -1
L_noep2:
v_and_b32 v18, 2, v1
v_cmp_ne_u32 vcc, 0, v18
v_cndmask_b32 v16, v16, v17, vcc
v_and_b32 v17, 0x7ff, v16
v_sub_u32 v17, 2047, v17
s_lshl_b32 s58, s6, 2
v_lshl_add_u32 v18, v17, 10, s58
v_and_b32 v19, 1, v1
v_lshl_add_u32 v18, v19, 1, v18
global_load_ushort v20, v18, s[16:17]
v_lshrrev_b32 v21, 8, v17
v_mul_u32_u24 v21, {YPT}, v21
v_bfe_u32 v22, v17, 2, 2
v_mul_u32_u24 v22, 20, v22
v_bfe_u32 v23, v17, 4, 4
v_add_u32 v22, v22, v23
v_lshl_add_u32 v21, v22, 4, v21
v_and_b32 v22, 3, v17
v_lshl_add_u32 v21, v22, 2, v21
v_mul_u32_u24 v22, {YPW}, v19
v_add_u32 v21, v21, v22
v_sub_u32 v22, 2047, v17
v_lshlrev_b32 v22, 1, v22
v_mul_u32_u24 v23, {UBS}, v19
v_add3_u32 v22, v22, v23, 0
v_add_u32 v22, {UB}, v22
ds_read_u16 v24, v22
v_mov_b32 v23, {FLAGS}
s_mov_b32 s11, 0
L_fwait:
ds_read_b128 {Q(32)}, v23
s_add_u32 s11, s11, 1
s_waitcnt lgkmcnt(0)
v_min3_u32 v32, v32, v33, v34
v_min_u32 v32, v32, v35
v_readfirstlane_b32 s58, v32
s_cmp_gt_u32 s11, 1000000
s_cbranch_scc1 L_fwait_done
s_cmp_lt_u32 s58, 8
s_cbranch_scc1 L_fwait
L_fwait_done:
ds_read_b32 v25, v21
ds_read_b32 v26, v21 offset:{2*YPW}
""")
a(f"""
v_ashrrev_i32 v27, 31, v16
v_not_b32 v27, v27
v_or_b32 v27, 0x80000000, v27
v_xor_b32 v27, v16, v27
v_and_b32 v27, s56, v27
v_mul_f32 v27, {fb(-LOG2E)}, v27
v_exp_f32 v27, v27
v_add_f32 v27, 1.0, v27
v_rcp_f32 v27, v27
v_cvt_pk_bf16_f32 v27, v27, v27
v_and_b32 v27, s56, v27
v_lshlrev_b32 v28, 4, v19
v_lshrrev_b32 v28, v28, s9
v_lshlrev_b32 v28, 16, v28
s_waitcnt lgkmcnt(0)
v_lshlrev_b32 v24, 16, v24
v_add_f32 v25, v25, v26
v_mul_f32 v28, v28, v24
v_cvt_pk_bf16_f32 v25, v25, v28
v_and_b32 v28, s56, v25
v_lshlrev_b32 v25, 16, v25
v_add_f32 v25, v25, v28
v_cvt_pk_bf16_f32 v25, v25, v25
v_and_b32 v25, s56, v25
""")
a(f"""
s_lshl_b32 s58, s6, 4
s_add_u32 s58, s58, {WS_FFN}
v_lshl_add_u32 v29, v1, 12, s58
v_min_u32 v30, 21, v1
v_add_u32 v30, 64, v30
v_lshl_add_u32 v30, v30, 12, s58
s_mov_b32 s11, 0
L_ppoll:
global_load_dwordx4 v[32:35], v29, s[44:45] sc1
global_load_dwordx4 v[36:39], v30, s[44:45] sc1
s_add_u32 s11, s11, 1
s_waitcnt vmcnt(0)
v_xor_b32 v40, s7, v35
v_xor_b32 v41, s7, v39
v_or_b32 v40, v40, v41
v_cmp_ne_u32 vcc, 0, v40
s_cmp_gt_u32 s11, {POLL_MAX}
s_cbranch_scc1 L_ppoll_done
s_cbranch_vccz L_ppoll_done
s_sleep 4
s_branch L_ppoll
L_ppoll_done:
s_mov_b32 s58, 0x04000c0c
s_mov_b32 s59, 0x0706000c
v_perm_b32 v35, v32, v33, s58
v_perm_b32 v39, v36, v37, s58
v_perm_b32 v35, v35, v34, s59
v_perm_b32 v39, v39, v38, s59
v_cmp_gt_u32 vcc, 22, v1
v_cndmask_b32 v36, 0, v36, vcc
v_cndmask_b32 v37, 0, v37, vcc
v_cndmask_b32 v38, 0, v38, vcc
v_cndmask_b32 v39, 0, v39, vcc
v_add_f32 v40, v32, v36
v_add_f32 v42, v33, v37
v_add_f32 v44, v34, v38
v_add_f32 v46, v35, v39
""")
reduce32([40, 42, 44, 46], [])
for r in (40, 42, 44, 46): a(f"v_mov_b32 v{r+1}, v{r}")
for r in (40, 42, 44, 46): a(f"v_permlane32_swap_b32 v{r}, v{r+1}")
for r in (40, 42, 44, 46): a(f"v_add_f32 v{r}, v{r}, v{r+1}")
a(f"""
v_cmp_ne_u32 vcc, 0, v19
v_cndmask_b32 v40, v40, v42, vcc
v_cndmask_b32 v44, v44, v46, vcc
v_and_b32 v41, 2, v1
v_cmp_ne_u32 vcc, 0, v41
v_cndmask_b32 v40, v40, v44, vcc
v_cvt_pk_bf16_f32 v40, v40, v40
v_and_b32 v40, s56, v40
v_mul_f32 v40, v40, v27
v_cvt_pk_bf16_f32 v40, v40, v40
v_and_b32 v40, s56, v40
v_add_f32 v40, v40, v24
v_cvt_pk_bf16_f32 v40, v40, v40
v_and_b32 v40, s56, v40
v_mul_f32 v41, {fb(-LOG2E)}, v40
v_exp_f32 v41, v41
v_add_f32 v41, 1.0, v41
v_rcp_f32 v41, v41
v_mul_f32 v40, v40, v41
v_cvt_pk_bf16_f32 v40, v40, v40
v_and_b32 v40, s56, v40
v_mul_f32 v40, v40, v25
v_cvt_pk_bf16_f32 v40, v40, v40
v_and_b32 v40, s56, v40
v_lshlrev_b32 v20, 16, v20
v_add_f32 v40, v40, v20
v_cvt_pk_bf16_f32 v40, v40, v40
s_mov_b64 exec, 15
buffer_store_short v40, v18, s[48:51], 0 offen
s_mov_b64 exec, -1
s_branch L_fin
""")
a.flush()
a(f"""
L_helper:
s_lshl_b32 s58, s47, 11
s_add_u32 s58, s58, {WS_STATS}
v_lshl_add_u32 v15, v1, 5, s58
v_add_u32 v9, 8192, v15
s_lshl_b32 s58, s47, 9
s_sub_u32 s58, {UB+4096-8-2048}, s58
v_lshlrev_b32 v10, 3, v1
v_sub_u32 v10, s58, v10
s_mov_b32 s11, 0
L_hpoll:
global_load_dwordx4 v[16:19], v15, s[44:45] sc1
global_load_dwordx4 v[20:23], v15, s[44:45] offset:16 sc1
global_load_dwordx4 v[24:27], v9, s[44:45] sc1
global_load_dwordx4 v[28:31], v9, s[44:45] offset:16 sc1
s_add_u32 s11, s11, 1
s_cmp_gt_u32 s11, 1
s_cbranch_scc1 L_hp2
s_waitcnt vmcnt(4)
""")
for t in range(8):
    a(f"v_lshlrev_b32 v{32+2*t}, 16, v{128+t}\n v_and_b32 v{33+2*t}, s56, v{128+t}")
a(f"""
L_hp2:
s_waitcnt vmcnt(0)
v_xor_b32 v48, s7, v19
v_xor_b32 v49, s7, v23
v_xor_b32 v50, s7, v27
v_xor_b32 v51, s7, v31
v_or_b32 v48, v48, v49
v_or3_b32 v48, v48, v50, v51
v_cmp_ne_u32 vcc, 0, v48
s_cmp_gt_u32 s11, {POLL_MAX}
s_cbranch_scc1 L_hpoll_done
s_cbranch_vccnz L_hpoll
L_hpoll_done:
""")
stamp(4)
def streg(t): return 16 + 4 * (t // 2) + (t & 1)
for t in range(8):
    a(f"v_and_b32 v{48+2*t}, s56, v{streg(t)}")
    a(f"v_rcp_f32 v{48+2*t}, v{48+2*t}")
for t in range(8):
    a(f"v_lshlrev_b32 v{64+2*t}, 16, v{streg(t)}")
for t in range(8):
    a(f"v_pk_add_f32 {P(64+2*t)}, {P(32+2*t)}, {P(64+2*t)} op_sel_hi:[1,0] neg_lo:[0,1] neg_hi:[0,1]")
for t in range(8):
    a(f"v_cvt_pk_bf16_f32 v{65+2*t}, v{64+2*t}, v{65+2*t}")
for t in range(8):
    a(f"v_lshlrev_b32 v{64+2*t}, 16, v{65+2*t}\n v_and_b32 v{65+2*t}, s56, v{65+2*t}")
for t in range(8):
    a(f"v_pk_mul_f32 {P(64+2*t)}, {P(64+2*t)}, {P(48+2*t)} op_sel_hi:[1,0]")
for k in range(2):
    for ch in range(2):
        b = 64 + 8 * k + ch
        d = 80 + 4 * k + 2 * ch
        a(f"v_cvt_pk_bf16_f32 v{d}, v{b+6}, v{b+4}")
        a(f"v_cvt_pk_bf16_f32 v{d+1}, v{b+2}, v{b}")
        a(f"ds_write_b64 v10, {P(d)} offset:{ch*UBS + (2048 if k == 0 else 0)}")
a(f"""
s_waitcnt lgkmcnt(0)
s_barrier
""")
stamp(5)
read_top2(16)
a(f"""
v_and_b32 v18, 0x7ff, v16
v_and_b32 v19, 0x7ff, v17
v_sub_u32 v18, 2047, v18
v_sub_u32 v19, 2047, v19
s_cmp_eq_u32 s61, 0
s_cbranch_scc1 L_noffn1
""")
for r in range(96, 112): a(f"v_mov_b32 v{r}, 0x3f803f80")
a(f"""
v_and_b32 v20, 1, v1
v_cmp_ne_u32 vcc, 0, v20
v_cndmask_b32 v20, v18, v19, vcc
v_lshrrev_b32 v21, 4, v1
v_lshlrev_b32 v21, 4, v21
s_lshl_b32 s58, s47, 8
v_add_u32 v21, s58, v21
v_lshl_add_u32 v21, v20, 10, v21
s_mov_b32 s58, 0x00030003
s_mov_b32 s59, 0x00030003
s_mov_b64 exec, s[58:59]
global_load_dwordx4 v[96:99], v21, s[16:17]
global_load_dwordx4 v[100:103], v21, s[16:17] offset:64
global_load_dwordx4 v[104:107], v21, s[16:17] offset:128
global_load_dwordx4 v[108:111], v21, s[16:17] offset:192
s_mov_b64 exec, -1
v_lshrrev_b32 v22, 1, v18
v_lshlrev_b32 v22, 4, v22
v_and_b32 v23, 1, v18
v_lshl_add_u32 v22, v23, 2, v22
v_lshrrev_b32 v24, 1, v19
v_lshlrev_b32 v24, 4, v24
v_and_b32 v23, 1, v19
v_lshl_add_u32 v24, v23, 2, v24
v_add_u32 v22, {WS_STATS}, v22
v_add_u32 v24, {WS_STATS}, v24
global_load_dword v112, v22, s[44:45] sc1
global_load_dword v113, v24, s[44:45] sc1
s_mov_b32 s58, 0x05040100
s_mov_b32 s59, 0x07060302
""")
for s in range(4):
    for k in range(4):
        r0 = 136 + 8 * s + 2 * k
        a(f"v_perm_b32 v{168+8*s+k}, v{r0+1}, v{r0}, s58")
        a(f"v_perm_b32 v{172+8*s+k}, v{r0+1}, v{r0}, s59")
for k in range(8):
    r0 = 200 + 2 * k
    a(f"v_perm_b32 v{216+k}, v{r0+1}, v{r0}, s58")
    a(f"v_perm_b32 v{224+k}, v{r0+1}, v{r0}, s59")
a("L_noffn1:")
a(f"""
s_lshl_b32 s58, s47, 8
v_lshl_add_u32 v20, v1, 2, s58
v_mov_b32 v23, 0x7fffffff
""")
for t in range(8):
    k, j = t // 4, t % 4
    a(f"""
v_add_u32 v21, {1024*k+j}, v20
v_add_u32 v{232+t}, {1024*j}, v{124+k}
v_cmp_eq_u32 vcc, v21, v18
v_cmp_eq_u32 s[58:59], v21, v19
s_or_b64 vcc, vcc, s[58:59]
v_cndmask_b32 v{232+t}, v{232+t}, v23, vcc
""")
for k in range(2):
    for ch in range(2):
        d = 80 + 4 * k + 2 * ch; b = 48 + 8 * k + 4 * ch
        a(f"v_and_b32 v{b}, s56, v{d+1}\n v_lshlrev_b32 v{b+1}, 16, v{d+1}\n v_and_b32 v{b+2}, s56, v{d}\n v_lshlrev_b32 v{b+3}, 16, v{d}")
a(f"""
s_lshl_b32 s58, s9, 16
s_and_b32 s59, s9, 0xffff0000
""")
for i in range(16): a(f"v_mul_f32 v{64+i}, {fb(-LOG2E)}, v{48+i}")
for i in range(16): a(f"v_exp_f32 v{64+i}, v{64+i}")
for i in range(16): a(f"v_add_f32 v{64+i}, 1.0, v{64+i}")
for i in range(16): a(f"v_rcp_f32 v{64+i}, v{64+i}")
for i in range(16): a(f"v_mul_f32 v{240+i}, {'s59' if (i>>2)&1 else 's58'}, v{48+i}")
for i in range(16): a(f"v_mul_f32 v{64+i}, v{64+i}, v{48+i}")
for base in (64, 240):
    for i in range(0, 16, 2):
        a(f"v_cvt_pk_bf16_f32 v{base+i+1}, v{base+i}, v{base+i+1}")
    for i in range(0, 16, 2):
        a(f"v_lshlrev_b32 v{base+i}, 16, v{base+i+1}\n v_and_b32 v{base+i+1}, s56, v{base+i+1}")
a(f"""
v_and_b32 v11, 3, v1
v_mul_u32_u24 v11, 20, v11
v_lshrrev_b32 v12, 2, v1
v_add_u32 v11, v11, v12
s_mul_i32 s58, s47, {YPT}
v_lshl_add_u32 v11, v11, 4, s58
v_mov_b32 v12, {FLAGS}
""")
def epilogue(k, lab):
    a(f"""
s_add_u32 s59, s47, {4*k+1}
s_mov_b32 s11, 0
{lab}:
ds_read_b128 {Q(16)}, v12
s_add_u32 s11, s11, 1
s_waitcnt lgkmcnt(0)
v_min3_u32 v16, v16, v17, v18
v_min_u32 v16, v16, v19
v_readfirstlane_b32 s58, v16
s_cmp_gt_u32 s11, 1000000
s_cbranch_scc1 {lab}_done
s_cmp_lt_u32 s58, s59
s_cbranch_scc1 {lab}
{lab}_done:
""")
    for w in range(4):
        a(f"ds_read_b128 {Q(16+4*w)}, v11 offset:{w*YPW + 4*k*YPT}")
    a("s_waitcnt lgkmcnt(0)")
    def rnd4():
        for i in range(0, 8, 2): a(f"v_cvt_pk_bf16_f32 v{17+i}, v{16+i}, v{17+i}")
        for i in range(0, 8, 2): a(f"v_lshlrev_b32 v{16+i}, 16, v{17+i}\n v_and_b32 v{17+i}, s56, v{17+i}")
    for i in range(0, 8, 2): a(f"v_pk_add_f32 {P(16+i)}, {P(16+i)}, {P(24+i)}")
    rnd4()
    for i in range(0, 8, 2): a(f"v_pk_add_f32 {P(16+i)}, {P(16+i)}, {P(240+8*k+i)}")
    rnd4()
    for i in range(0, 8, 2): a(f"v_pk_mul_f32 {P(16+i)}, {P(16+i)}, {P(64+8*k+i)}")
    rnd4()
    for j in range(4):
        t = 4 * k + j
        a(f"v_add_f32 v{16+j}, v{16+j}, v{32+2*t}\n v_add_f32 v{20+j}, v{20+j}, v{33+2*t}")
    for j in range(4):
        a(f"v_cvt_pk_bf16_f32 v{24+j}, v{16+j}, v{20+j}")
        a(f"buffer_store_dword v{24+j}, v{232+4*k+j}, s[48:51], 0 offen")
epilogue(0, "L_e0")
stamp(6)
a(f"""
s_cmp_eq_u32 s61, 0
s_cbranch_scc1 L_noffn2
s_waitcnt vmcnt(4)
""")
for s in range(4):
    a(f"v_mfma_f32_16x16x32_bf16 {Q(116)}, {Q(96+4*s)}, {Q(168+8*s)}, {Q(116) if s else '0'}")
    a(f"v_mfma_f32_16x16x32_bf16 {Q(120)}, {Q(96+4*s)}, {Q(172+8*s)}, {Q(120) if s else '0'}")
a(f"""
v_lshlrev_b32 v114, 16, v112
v_lshlrev_b32 v115, 16, v113
v_and_b32 v16, 7, v1
v_lshlrev_b32 v16, 6, v16
v_and_b32 v17, 8, v1
v_lshl_add_u32 v16, v17, 2, v16
s_lshl_b32 s58, s47, 2
s_add_u32 s58, s58, {RED}
v_add_u32 v16, s58, v16
s_add_u32 s59, s58, {FSYNC-RED}
v_mov_b32 v17, s59
v_mov_b32 v18, 1
v_fma_f32 v116, -v114, v118, v116
v_fma_f32 v117, -v115, v118, v117
v_fma_f32 v120, -v114, v122, v120
v_fma_f32 v121, -v115, v122, v121
s_mov_b64 exec, 0xffff
ds_write_b32 v16, v116
ds_write_b32 v16, v117 offset:512
ds_write_b32 v16, v120 offset:16
ds_write_b32 v16, v121 offset:528
s_mov_b64 exec, 1
ds_write_b32 v17, v18
s_mov_b64 exec, -1
v_mov_b32 v17, {FSYNC}
v_and_b32 v16, 15, v1
v_lshlrev_b32 v16, 6, v16
v_add_u32 v16, {RED}, v16
v_and_b32 v19, 8, v1
v_cmp_ne_u32 vcc, 0, v19
v_cndmask_b32 v19, v112, v113, vcc
v_and_b32 v19, s56, v19
v_rcp_f32 v19, v19
s_mov_b32 s11, 0
L_fs:
ds_read_b128 {Q(20)}, v17
s_add_u32 s11, s11, 1
s_waitcnt lgkmcnt(0)
v_min3_u32 v20, v20, v21, v22
v_min_u32 v20, v20, v23
v_readfirstlane_b32 s58, v20
s_cmp_gt_u32 s11, 1000000
s_cbranch_scc1 L_fs_done
s_cmp_eq_u32 s58, 0
s_cbranch_scc1 L_fs
L_fs_done:
ds_read_b128 {Q(96)}, v16
ds_read_b128 {Q(100)}, v16 offset:16
ds_read_b128 {Q(104)}, v16 offset:32
ds_read_b128 {Q(108)}, v16 offset:48
s_waitcnt lgkmcnt(0)
""")
for q in range(4):
    b = 96 + 4 * q
    a(f"v_pk_add_f32 {P(b)}, {P(b)}, {P(b+2)}")
for q in range(4):
    b = 96 + 4 * q
    a(f"v_add_f32 v{b}, v{b}, v{b+1}")
for q in range(4):
    a(f"v_mul_f32 v{96+4*q}, v{96+4*q}, v19")
a(f"""
v_cvt_pk_bf16_f32 v21, v96, v100
v_cvt_pk_bf16_f32 v23, v104, v108
v_lshlrev_b32 v20, 16, v21
v_and_b32 v21, s56, v21
v_lshlrev_b32 v22, 16, v23
v_and_b32 v23, s56, v23
v_mul_f32 v24, {fb(-LOG2E)}, v20
v_mul_f32 v25, {fb(-LOG2E)}, v21
v_exp_f32 v24, v24
v_exp_f32 v25, v25
v_add_f32 v24, 1.0, v24
v_add_f32 v25, 1.0, v25
v_rcp_f32 v24, v24
v_rcp_f32 v25, v25
v_mul_f32 v20, v20, v24
v_mul_f32 v21, v21, v25
v_cvt_pk_bf16_f32 v21, v20, v21
v_lshlrev_b32 v20, 16, v21
v_and_b32 v21, s56, v21
v_mul_f32 v20, v20, v22
v_mul_f32 v21, v21, v23
v_cvt_pk_bf16_f32 v20, v20, v21
""")
for i in range(16): a(f"v_readlane_b32 s{80+i}, v20, {i}")
for p in range(8):
    for tok in range(2):
        for ch in range(2):
            acc = 24 + 2 * tok + ch
            a(f"v_dot2_f32_bf16 v{acc}, v{216+8*ch+p}, s{80+8*tok+p}, {'v%d' % acc if p else '0'}")
a(f"""
s_mov_b32 s58, 0x07060503
s_mov_b32 s59, 0x07060502
s_lshl_b32 s11, s60, 12
s_add_u32 s11, s11, {WS_FFN}
v_subrev_u32 v16, 256, v0
v_lshl_add_u32 v16, v16, 4, s11
v_perm_b32 v24, v24, v27, s58
s_mov_b32 s58, 0x07060501
v_perm_b32 v25, v25, v27, s59
v_perm_b32 v26, v26, v27, s58
v_mov_b32 v27, s7
global_store_dwordx4 v16, v[24:27], s[44:45] sc1
s_nop 1
L_noffn2:
""")
stamp(7)
epilogue(1, "L_e1")
a.flush()
a("L_fin:")
if STAMPS:
    a("s_waitcnt vmcnt(0)")
    a("s_memrealtime s[96:97]\n s_waitcnt lgkmcnt(0)")
    a(f"""
s_lshl_b32 s11, s2, 3
s_add_u32 s11, s11, s3
s_lshl_b32 s11, s11, 7
s_add_u32 s11, s11, {WS_STAMP}
v_mov_b32 v2, s11
s_mov_b64 exec, 1
""")
    for k in range(9):
        src = 64 + 2 * k if k < 8 else 96
        a(f"v_mov_b32 v4, s{src}\n v_mov_b32 v5, s{src+1}\n global_store_dwordx2 v2, v[4:5], s[44:45] offset:{8*k}\n s_nop 1")
a("L_end:")
a("s_endpgm")
a.raw(".p2align 6")
a.raw("L_rowtab:")
for part in range(4):
    vals = []
    for x in range(16):
        o1 = ROW[(part, rnd(part, x))] * ROWB; o2 = ROW[(part + 4, rnd(part + 4, x))] * ROWB
        vals.append("0x%08x" % (o1 | (o2 << 16)))
    a.raw(".long " + ", ".join(vals))
a.raw("L_codeend:")
a.raw(f""".section .rodata,"a"
.p2align 6
.amdhsa_kernel {NAME}_kernel
  .amdhsa_next_free_vgpr 256
  .amdhsa_next_free_sgpr 102
  .amdhsa_accum_offset 256
  .amdhsa_group_segment_fixed_size 0
  .amdhsa_kernarg_size 120
  .amdhsa_user_sgpr_count 2
  .amdhsa_user_sgpr_kernarg_segment_ptr 1
  .amdhsa_system_sgpr_workgroup_id_x 1
.end_amdhsa_kernel""")
open(OUT, "w").write(a.text())
print("wrote", OUT, "instrs", a.nins, "lds", LDS_TOTAL)
```

```python
import sys, struct
from asmlib import Asm

NAME = "recurrent_scan__ssm_conv_s4d__moe_arch_mod__prompt"
DBGST = "--dbgstamps" in sys.argv
STAMPS = "--stamps" in sys.argv or DBGST
OUT = [a for a in sys.argv[1:] if not a.startswith("--")]
OUT = OUT[0] if OUT else f"cdna_kernels/{NAME}.s"

def fb(x): return "0x%08x" % struct.unpack("<I", struct.pack("<f", x))[0]
LOG2E = 1.4426950408889634
INV2PI = 0.15915494309189535

ROWB = 544
TBS = 64 * ROWB
YPT = 1280
YPW = 8 * YPT
CB = 2 * TBS
CPS = 4160
UB = CB + 8 * CPS
UBS = 4608
MISC = UB + 2 * UBS
FLAGS = MISC
KEYS = MISC + 32
FSYNC = MISC + 64
DUMP = MISC + 128
RED = MISC + 768
LDS_TOTAL = MISC + 768 + 1024
WS_STATS = 4096
WS_FFN = 65536
WS_STAMP = 8 << 20
POLL_MAX = 20000

a = Asm()
nst = [0]
def stamp(k):
    if STAMPS:
        a(f"s_memrealtime s[{64+2*k}:{65+2*k}]\n s_waitcnt lgkmcnt(0)")

ROW = {}
for t in range(8): ROW[(t, 0)] = t; ROW[(t, 8)] = 8 + t
YROW = 16
for t in range(8): ROW[(t, 16)] = 32 + t
for t in range(4): ROW[(t, 4)] = 40 + t; ROW[(t, 12)] = 44 + t
for i, e in enumerate(range(1, 16, 2)): ROW[(0, e)] = 48 + i
for i, e in enumerate((2, 6, 10, 14)): ROW[(0, e)] = 56 + i; ROW[(1, e)] = 60 + i
def rnd(tau, x):
    sh = [0, 1, 2, 2, 3, 3, 3, 3][tau]
    if sh == 0: return x
    q = x >> sh; rem = x & ((1 << sh) - 1); half = 1 << (sh - 1)
    if rem > half or (rem == half and (q & 1)): q += 1
    return q << sh

def P(r): return f"v[{r}:{r+1}]"
def Q(r): return f"v[{r}:{r+3}]"

def cmul2(dst, src, w, tmp):
    for k in (0, 2):
        a(f"v_pk_mul_f32 {P(tmp+k)}, {P(src+k)}, {P(w+k)} op_sel:[0,0] op_sel_hi:[1,0]")
    for k in (0, 2):
        a(f"v_pk_fma_f32 {P(dst+k)}, {P(src+k)}, {P(w+k)}, {P(tmp+k)} op_sel:[1,1,0] op_sel_hi:[0,1,1] neg_lo:[1,0,0]")

pkflip = [0]
def wrow(src, row, vaddr=48):
    pk = 44 + 2 * (pkflip[0] & 1); pkflip[0] += 1
    a(f"v_cvt_pk_bf16_f32 v{pk}, v{src}, v{src+1}")
    a(f"v_cvt_pk_bf16_f32 v{pk+1}, v{src+2}, v{src+3}")
    a(f"ds_write_b64 v{vaddr}, {P(pk)} offset:{row*ROWB}")

def reduce32(regs, fill):
    fill = list(fill)
    def F(n):
        for _ in range(n):
            if fill: a(fill.pop(0))
    for sh in (8, 4, 2, 1):
        for r in regs:
            a(f"v_add_f32_dpp v{r}, v{r}, v{r} row_ror:{sh} row_mask:0xf bank_mask:0xf")
        F(max(0, 3 - len(regs)))
    for r in regs: a(f"v_mov_b32 v{r+1}, v{r}")
    F(2)
    for r in regs: a(f"v_permlane16_swap_b32 v{r}, v{r+1}")
    F(1)
    for r in regs: a(f"v_add_f32 v{r}, v{r}, v{r+1}")
    F(100)

a.raw(open(f"cdna_kernels/{NAME}.s.ref").read().split("; @launch")[0].rstrip())
a.raw(f"; @launch grid=(256,1,1) block=(512,1,1) lds={LDS_TOTAL}")
a.raw(f""".amdgcn_target "amdgcn-amd-amdhsa--gfx950"
.text
.globl {NAME}_kernel
.p2align 8
.type {NAME}_kernel,@function
{NAME}_kernel:""")
a(f"""
s_cmp_ge_u32 s2, 256
s_cbranch_scc1 L_end
s_load_dwordx16 s[16:31], s[0:1], 0
s_load_dwordx8 s[32:39], s[0:1], 64
s_load_dwordx4 s[40:43], s[0:1], 96
s_load_dwordx2 s[44:45], s[0:1], 112
s_getpc_b64 s[12:13]
L_pc:
v_lshlrev_b32 v2, 7, v0
v_min_u32 v2, L_codeend-L_pc-4, v2
global_load_dword v3, v2, s[12:13]
v_and_b32 v1, 63, v0
v_lshrrev_b32 v5, 6, v0
v_readfirstlane_b32 s3, v5
s_and_b32 s4, s2, 7
s_lshr_b32 s5, s2, 3
s_lshl_b32 s6, s4, 5
s_add_u32 s6, s6, s5
s_and_b32 s14, s3, 1
s_lshr_b32 s15, s3, 1
""")
if STAMPS: a("s_memrealtime s[64:65]")
a(f"""
v_and_b32 v6, 15, v1
v_lshlrev_b32 v7, 2, v6
s_lshl_b32 s11, s15, 6
s_add_u32 s11, s11, L_rowtab-L_pc
v_add_u32 v7, s11, v7
global_load_dword v126, v7, s[12:13]
""")
a(f"""
v_mov_b32 v8, 0
v_mov_b32 v9, 0
v_mov_b32 v10, 0
v_mov_b32 v11, 0
v_lshrrev_b32 v12, 5, v1
v_mul_u32_u24 v12, {UBS}, v12
v_and_b32 v13, 31, v1
v_lshl_add_u32 v12, v13, 4, v12
v_add_u32 v12, {UB+4096}, v12
ds_write_b128 v12, v[8:11]
v_lshrrev_b32 v12, 1, v1
v_mul_u32_u24 v12, {CPS}, v12
v_and_b32 v13, 1, v1
v_lshl_add_u32 v12, v13, 4, v12
v_add_u32 v12, {CB}, v12
v_lshlrev_b32 v13, 4, v1
v_add_u32 v13, {MISC-256}, v13
v_cmp_gt_u32 vcc, 16, v1
v_cndmask_b32 v12, v13, v12, vcc
ds_write_b128 v12, v[8:11]
""")
a(f"""
s_lshl_b32 s11, s6, 1
s_add_u32 s11, s11, s14
s_lshl_b32 s11, s11, 8
v_lshl_add_u32 v14, v1, 2, s11
s_lshl_b32 s46, s2, 3
s_sub_u32 s47, s3, 4
s_lshl_b32 s11, s47, 1
s_add_u32 s46, s46, s11
s_lshl_b32 s46, s46, 10
v_and_b32 v13, 31, v1
v_lshlrev_b32 v13, 4, v13
v_lshrrev_b32 v15, 5, v1
v_lshl_add_u32 v15, v15, 10, v13
v_add_u32 v15, s46, v15
s_lshl_b32 s11, s6, 2
s_cmp_lt_u32 s3, 4
s_waitcnt lgkmcnt(0)
s_load_dword s8, s[26:27], s11
s_load_dword s9, s[28:29], s11
s_load_dword s10, s[44:45], 0
s_cbranch_scc1 L_noln0
global_load_dwordx4 v[16:19], v15, s[16:17]
global_load_dwordx4 v[20:23], v15, s[16:17] offset:512
global_load_dwordx4 v[24:27], v13, s[32:33]
global_load_dwordx4 v[28:31], v13, s[32:33] offset:512
L_noln0:
global_load_dword v4, v14, s[18:19]
global_load_dword v5, v14, s[20:21]
global_load_dword v6, v14, s[22:23]
global_load_dword v7, v14, s[24:25]
s_mov_b32 s48, s40
s_and_b32 s49, s41, 0xffff
s_mov_b32 s50, 0x200000
s_mov_b32 s51, 0x20000
s_mov_b32 s56, 0xffff0000
s_mov_b32 s57, 0xffff
s_cmp_lt_u32 s3, 4
s_cbranch_scc1 L_tables
""")
a(f"""
s_mov_b32 s46, 0x3f803f80
s_lshl_b32 s11, s2, 2
s_add_u32 s11, s11, s47
s_lshl_b32 s11, s11, 4
s_add_u32 s11, s11, {WS_STATS}
v_mov_b32 v12, s11
s_waitcnt vmcnt(6)
""")
for i in range(8):
    acc = 48 + 2 * (i & 1)
    a(f"v_dot2_f32_bf16 v{acc}, v{16+i}, s46, {'0' if i < 2 else 'v%d' % acc}")
unp = []
for i in range(8):
    unp.append(f"v_lshlrev_b32 v{32+2*i}, 16, v{16+i}")
    unp.append(f"v_and_b32 v{33+2*i}, s56, v{16+i}")
for _ in range(3): a(unp.pop(0))
a("v_add_f32 v48, v48, v50")
a(unp.pop(0)); a(unp.pop(0))
reduce32([48], unp)
a(f"""
v_mul_f32 v50, {fb(1/512)}, v48
v_cvt_pk_bf16_f32 v54, v50, v50
v_mov_b32 v56, 0
v_mov_b32 v57, 0
v_and_b32 v52, s56, v54
s_waitcnt vmcnt(4)
""")
for i in range(8):
    t0 = 58 + 0; t1 = 60
    a(f"v_pk_add_f32 {P(58)}, {P(32+2*i)}, {P(52)} op_sel_hi:[1,0] neg_lo:[0,1] neg_hi:[0,1]")
    a(f"v_pk_add_f32 {P(32+2*i)}, {P(32+2*i)}, {P(50)} op_sel_hi:[1,0] neg_lo:[0,1] neg_hi:[0,1]")
    a(f"v_cvt_pk_bf16_f32 v{60+(i&1)}, v58, v59")
    a(f"v_pk_fma_f32 {P(56)}, {P(32+2*i)}, {P(32+2*i)}, {P(56)}")
    a(f"v_dot2_f32_bf16 v62, v{60+(i&1)}, v{24+i}, {'0' if i == 0 else 'v62'}")
a("v_add_f32 v56, v56, v57")
reduce32([56, 62], [])
a(f"""
v_mul_f32 v56, {fb(1/512)}, v56
v_cvt_pk_bf16_f32 v56, v56, v56
v_and_b32 v56, s56, v56
v_add_f32 v56, {fb(1e-5)}, v56
v_cvt_pk_bf16_f32 v56, v56, v56
v_and_b32 v56, s56, v56
v_sqrt_f32 v56, v56
v_cvt_pk_bf16_f32 v56, v56, v56
v_and_b32 v56, s56, v56
v_rcp_f32 v57, v56
v_and_or_b32 v8, v54, s57, v56
v_mul_f32 v62, v62, v57
v_cvt_pk_bf16_f32 v62, v62, v62
v_readlane_b32 s58, v8, 32
v_ashrrev_i32 v63, 31, v62
v_or_b32 v63, 0x80000000, v63
v_xor_b32 v62, v62, v63
v_lshrrev_b32 v62, 16, v62
v_mov_b32 v9, s58
v_readlane_b32 s59, v62, 32
s_waitcnt lgkmcnt(0)
s_add_u32 s7, s10, 0x9E3779B9
s_lshl_b32 s59, s59, 16
v_mov_b32 v11, s7
v_or_b32 v10, s59, v62
s_mov_b64 exec, 1
global_store_dwordx4 v12, v[8:11], s[44:45] sc1
s_mov_b64 exec, -1
""")
stamp(1)
a(f"""
s_waitcnt vmcnt(1)
s_lshl_b32 s11, s47, 18
s_lshl_b32 s58, s6, 2
s_add_u32 s11, s11, s58
v_lshl_add_u32 v124, v1, 12, s11
v_add_u32 v125, 0x100000, v124
""")
for j in range(4): a(f"global_load_dword v{128+j}, v124, s[16:17] offset:{1024*j}")
for j in range(4): a(f"global_load_dword v{132+j}, v125, s[16:17] offset:{1024*j}")
a(f"""
s_mul_i32 s60, s4, 11
s_add_u32 s60, s60, s5
s_cmp_lt_u32 s5, 11
s_cselect_b32 s61, 1, 0
s_cmp_lt_u32 s60, 86
s_cselect_b32 s61, s61, 0
s_cmp_eq_u32 s61, 0
s_cbranch_scc1 L_tables
v_lshrrev_b32 v16, 4, v1
v_lshlrev_b32 v16, 3, v16
s_lshl_b32 s11, s47, 7
s_add_u32 s11, s11, 1
v_add_u32 v16, s11, v16
v_mul_u32_u24 v16, 2752, v16
v_and_b32 v17, 7, v1
v_lshl_add_u32 v16, v17, 2, v16
s_lshl_b32 s11, s60, 5
v_add_u32 v16, s11, v16
v_mov_b32 v17, 0
v_mov_b32 v18, s34
v_mov_b32 v19, s35
v_mov_b32 v20, s36
v_mov_b32 v21, s37
v_and_b32 v22, 8, v1
v_cmp_ne_u32 vcc, 0, v22
v_cndmask_b32 v18, v18, v20, vcc
v_cndmask_b32 v19, v19, v21, vcc
v_lshl_add_u64 v[18:19], v[16:17], 0, v[18:19]
s_mov_b32 s52, {3*2752}
s_mov_b32 s53, 0
s_mov_b32 s54, {26*2752}
s_mov_b32 s55, 0
""")
for s in range(4):
    for grp in range(3):
        for k in range(3):
            i = 3 * grp + k
            if i < 8: a(f"global_load_dword v{136+8*s+i}, v[18:19], off offset:{(k-1)*2752}")
        if not (s == 3 and grp == 2):
            a(f"v_lshl_add_u64 v[18:19], v[18:19], 0, {'s[52:53]' if grp < 2 else 's[54:55]'}")
a(f"""
s_lshl_b32 s11, s60, 14
s_lshl_b32 s58, s47, 8
s_add_u32 s11, s11, s58
v_lshl_add_u32 v16, v1, 2, s11
""")
for c in range(16):
    if c and c % 4 == 0: a("v_add_u32 v16, 4096, v16")
    a(f"global_load_dword v{200+c}, v16, s[38:39] offset:{1024*(c%4)}")
a("s_branch L_tables2")
a.flush()
a(f"""
L_tables:
s_cmp_lt_u32 s3, 4
s_cbranch_scc0 L_tables2
s_waitcnt vmcnt(0) lgkmcnt(0)
s_add_u32 s7, s10, 0x9E3779B9
L_tables2:
""")

a(f"""
s_lshl_b32 s11, s14, 4
s_lshr_b32 s58, s8, s11
s_lshl_b32 s58, s58, 16
v_mov_b32 v16, {fb(LOG2E)}
v_mul_f32 v17, s58, v16
v_lshlrev_b32 v18, 16, v4
v_and_b32 v19, s56, v4
v_exp_f32 v17, v17
v_mul_f32 v18, v18, v16
v_mul_f32 v19, v19, v16
v_exp_f32 v18, v18
v_exp_f32 v19, v19
s_mov_b32 s58, {fb(INV2PI)}
s_mov_b32 s63, {fb(256.0)}
s_mov_b32 s62, 4.0
s_cmp_eq_u32 s15, 1
s_cselect_b32 s62, 1.0, s62
s_cmp_eq_u32 s15, 2
s_cselect_b32 s62, {fb(8.0)}, s62
s_cmp_eq_u32 s15, 3
s_cselect_b32 s62, {fb(128.0)}, s62
s_cselect_b32 s63, {fb(16.0)}, s63
s_cselect_b32 s58, {fb(-INV2PI)}, s58
v_cvt_pk_bf16_f32 v17, v17, v17
v_and_b32 v17, s56, v17
v_cvt_pk_bf16_f32 v18, v18, v19
v_and_b32 v19, s56, v18
v_lshlrev_b32 v18, 16, v18
v_mul_f32 v8, v18, v17
v_mul_f32 v9, v19, v17
v_lshlrev_b32 v10, 16, v5
v_and_b32 v11, s56, v5
v_mul_f32 v8, {fb(-LOG2E)}, v8
v_mul_f32 v9, {fb(-LOG2E)}, v9
v_mul_f32 v10, v10, v17
v_mul_f32 v11, v11, v17
v_mul_f32 v10, s58, v10
v_mul_f32 v11, s58, v11
v_add_f32 v17, v17, v17
v_lshlrev_b32 v12, 16, v6
v_lshlrev_b32 v13, 16, v7
v_and_b32 v14, s56, v6
v_and_b32 v15, s56, v7
v_mul_f32 v12, v12, v17
v_mul_f32 v13, v13, v17
v_mul_f32 v14, v14, v17
v_mul_f32 v15, v15, v17
""")
for (dst, sp, t) in ((16, "s62", 28), (20, "s63", 36)):
    a(f"""
v_mul_f32 v{t}, {sp}, v8
v_mul_f32 v{t+1}, {sp}, v9
v_mul_f32 v{t+2}, {sp}, v10
v_mul_f32 v{t+3}, {sp}, v11
v_exp_f32 v{t}, v{t}
v_exp_f32 v{t+1}, v{t+1}
v_fract_f32 v{t+2}, v{t+2}
v_fract_f32 v{t+3}, v{t+3}
v_cos_f32 v{dst}, v{t+2}
v_sin_f32 v{dst+1}, v{t+2}
v_cos_f32 v{dst+2}, v{t+3}
v_sin_f32 v{dst+3}, v{t+3}
""")
for (dst, t) in ((16, 28), (20, 36)):
    a(f"""
v_mul_f32 v{dst}, v{dst}, v{t}
v_mul_f32 v{dst+1}, v{dst+1}, v{t}
v_mul_f32 v{dst+2}, v{dst+2}, v{t+1}
v_mul_f32 v{dst+3}, v{dst+3}, v{t+1}
""")
a(f"""
s_mul_i32 s11, s14, {TBS}
v_lshl_add_u32 v48, v1, 3, s11
s_cmp_eq_u32 s15, 0
s_cbranch_scc1 L_roleB
s_cmp_eq_u32 s15, 1
s_cbranch_scc1 L_roleC
s_cmp_eq_u32 s15, 2
s_cbranch_scc1 L_roleA
v_mov_b32 v12, 1.0
v_mov_b32 v13, 0
v_mov_b32 v14, 1.0
v_mov_b32 v15, 0
v_add_u32 v48, {YROW*ROWB}, v48
L_roleA:
""")
S, WA, WW, WC, C1, C2, C3, T1, T2 = 12, 16, 20, 24, 28, 32, 36, 40, 52
cmul2(C1, S, WA, T1)
for i in range(8):
    wrow(S, i); wrow(C1, 8 + i)
    if i < 7:
        cmul2(S, S, WW, T1); cmul2(C1, C1, WW, T2)
a("s_branch L_tabdone")
a.flush()
a("L_roleB:")
cmul2(WC, WA, WA, T1)
cmul2(C1, S, WA, T2)
cmul2(C2, C1, WC, T1)
cmul2(C3, C2, WA, T2)
for i in range(8):
    if i < 4: wrow(C1, ROW[(i, 4)]); wrow(C2, ROW[(i, 12)])
    if i > 0: wrow(C3, ROW[(i, 16)])
    if i < 3: cmul2(C1, C1, WW, T1); cmul2(C2, C2, WW, T2)
    if i < 7: cmul2(C3, C3, WW, T1)
a("s_branch L_tabdone")
a.flush()
a("L_roleC:")
cmul2(WC, WA, WA, T1)
cmul2(C1, S, WA, T2)
for e in range(1, 16, 2):
    wrow(C1, ROW[(0, e)])
    if e % 4 == 1:
        cmul2(C2, C1, WA, T2)
    if e < 15: cmul2(C1, C1, WC, T1)
    if e % 4 == 1:
        cmul2(C3, C2, WW, T2)
        wrow(C2, ROW[(0, e + 1)]); wrow(C3, ROW[(1, e + 1)])
a.flush()
a("L_tabdone:")
a(f"""
s_mul_i32 s11, s14, {TBS}
v_lshrrev_b32 v12, 4, v1
v_lshl_add_u32 v13, v12, 4, s11
v_and_b32 v8, s57, v126
v_lshrrev_b32 v9, 16, v126
v_add_u32 v8, v8, v13
v_add_u32 v9, v9, v13
v_and_b32 v14, 15, v1
v_mul_u32_u24 v10, {ROWB}, v14
v_add_u32 v10, v10, v13
s_mul_i32 s58, s14, {4*CPS}
s_lshl_b32 s59, s15, 9
s_add_u32 s58, s58, s59
s_add_u32 s58, s58, {CB+32-8}
v_lshlrev_b32 v11, 5, v14
v_lshl_add_u32 v11, v12, 3, v11
v_add_u32 v11, s58, v11
s_waitcnt lgkmcnt(0)
s_barrier
""")
stamp(2)
def gemm_reads(s):
    a(f"ds_read_b128 {Q(16+12*s)}, v10 offset:{YROW*ROWB+64*s}")
    a(f"ds_read_b128 {Q(20+12*s)}, v8 offset:{64*s}")
    a(f"ds_read_b128 {Q(24+12*s)}, v9 offset:{64*s}")
for s in range(4): gemm_reads(s)
for s in range(8):
    if s + 4 < 8:
        gemm_reads(s + 4); a("s_waitcnt lgkmcnt(12)")
    else:
        a(f"s_waitcnt lgkmcnt({3*(7-s)})")
    c1 = "0" if s == 0 else Q(112); c2 = "0" if s == 0 else Q(116)
    a(f"v_mfma_f32_16x16x32_bf16 {Q(112)}, {Q(20+12*s)}, {Q(16+12*s)}, {c1}")
    a(f"v_mfma_f32_16x16x32_bf16 {Q(116)}, {Q(24+12*s)}, {Q(16+12*s)}, {c2}")
for k, D in enumerate((112, 116)):
    o = 8 + 2048 * k
    t = 16 + 4 * k
    a(f"""
v_cvt_pk_bf16_f32 v{t}, v{D}, v{D+1}
v_cvt_pk_bf16_f32 v{t+1}, v{D+2}, v{D+3}
v_cvt_pk_bf16_f32 v{t+2}, v{D+1}, v{D+2}
ds_write_b64 v11, {P(t)} offset:{o}
ds_write_b32 v11, v{t} offset:{o+2*CPS-4}
ds_write_b32 v11, v{t+1} offset:{o+2*CPS}
ds_write_b16 v11, v{t} offset:{o+CPS-2}
ds_write_b32 v11, v{t+2} offset:{o+CPS}
ds_write_b16_d16_hi v11, v{t+1} offset:{o+CPS+4}
ds_write_b16 v11, v{t} offset:{o+3*CPS-6}
ds_write_b32 v11, v{t+2} offset:{o+3*CPS-4}
ds_write_b16_d16_hi v11, v{t+1} offset:{o+3*CPS}
""")
a(f"""
s_waitcnt lgkmcnt(0)
s_barrier
""")
stamp(3)
a(f"""
s_cmp_lt_u32 s3, 4
s_cbranch_scc0 L_helper
""")
a(f"""
v_and_b32 v8, 15, v1
v_add_u32 v9, 1, v8
v_and_b32 v10, 3, v9
v_sub_u32 v9, v9, v10
v_mul_u32_u24 v10, {CPS}, v10
v_lshrrev_b32 v12, 4, v1
v_lshl_add_u32 v9, v12, 3, v9
v_lshl_add_u32 v10, v9, 1, v10
s_mul_i32 s58, s14, {4*CPS}
s_lshl_b32 s59, s15, 6
s_add_u32 s58, s58, s59
s_add_u32 s58, s58, {CB}
v_add_u32 v10, s58, v10
""")
for i in range(32):
    a(f"ds_read_b64 {P(128+4*i)}, v10 offset:{128*i}")
    a(f"ds_read_b64 {P(130+4*i)}, v10 offset:{128*i+8}")
a(f"""
s_mul_i32 s58, s14, {UBS}
s_add_u32 s58, s58, s59
s_add_u32 s58, s58, {UB+4064-3584}
v_lshlrev_b32 v11, 4, v12
v_lshlrev_b32 v9, 5, v8
v_sub_u32 v11, v11, v9
v_add_u32 v11, s58, v11
v_mul_u32_u24 v13, 20, v12
v_add_u32 v13, v13, v8
s_mul_i32 s58, s3, {YPW}
v_lshl_add_u32 v13, v13, 4, s58
s_lshl_b32 s58, s3, 2
s_add_u32 s58, s58, {FLAGS}
v_lshlrev_b32 v14, 2, v1
v_add_u32 v14, {DUMP}, v14
v_mov_b32 v9, s58
v_cmp_eq_u32 vcc, 0, v1
v_cndmask_b32 v14, v14, v9, vcc
v_lshlrev_b32 v15, 4, v0
v_add_u32 v15, {WS_STATS}, v15
v_add_u32 v9, 8192, v15
s_mov_b32 s11, 0
L_cpoll:
global_load_dwordx4 v[16:19], v15, s[44:45] sc1
global_load_dwordx4 v[20:23], v9, s[44:45] offset:-4096 sc1
global_load_dwordx4 v[24:27], v9, s[44:45] sc1
v_add_u32 v32, 12288, v15
global_load_dwordx4 v[28:31], v32, s[44:45] sc1
s_add_u32 s11, s11, 1
s_waitcnt vmcnt(0)
v_xor_b32 v32, s7, v19
v_xor_b32 v33, s7, v23
v_xor_b32 v34, s7, v27
v_xor_b32 v35, s7, v31
v_or_b32 v32, v32, v33
v_or3_b32 v32, v32, v34, v35
v_cmp_ne_u32 vcc, 0, v32
s_cmp_gt_u32 s11, {POLL_MAX}
s_cbranch_scc1 L_cpoll_done
s_cbranch_vccnz L_cpoll
L_cpoll_done:
""")
stamp(4)
a(f"""
v_lshlrev_b32 v32, 1, v0
v_sub_u32 v32, 2047, v32
""")
for k in range(4):
    g = 18 + 4 * k
    a(f"v_subrev_u32 v33, {512*k}, v32" if k else "v_mov_b32 v33, v32")
    a(f"v_lshl_or_b32 v{36+2*k}, v{g}, 16, v33")
    a(f"v_subrev_u32 v33, 1, v33")
    a(f"v_and_or_b32 v{37+2*k}, v{g}, s56, v33")
a("v_max_u32 v44, v36, v37\n v_min_u32 v45, v36, v37")
for r in range(38, 44):
    a(f"v_med3_u32 v45, v44, v45, v{r}\n v_max_u32 v44, v44, v{r}")
def merge_dpp(ctrl):
    a(f"""
v_mov_b32_dpp v46, v44 {ctrl} row_mask:0xf bank_mask:0xf
v_mov_b32_dpp v47, v45 {ctrl} row_mask:0xf bank_mask:0xf
v_min_u32 v48, v44, v46
v_max_u32 v44, v44, v46
v_max3_u32 v45, v45, v47, v48
""")
for sh in (8, 4, 2, 1): merge_dpp(f"row_ror:{sh}")
for sw in ("v_permlane16_swap_b32", "v_permlane32_swap_b32"):
    a(f"""
v_mov_b32 v46, v44
v_mov_b32 v47, v45
{sw} v44, v46
{sw} v45, v47
v_min_u32 v48, v44, v46
v_max_u32 v44, v44, v46
v_max3_u32 v45, v45, v47, v48
""")
a(f"""
s_lshl_b32 s58, s3, 3
s_add_u32 s58, s58, {KEYS}
v_mov_b32 v46, s58
s_mov_b64 exec, 1
ds_write_b64 v46, {P(44)}
s_mov_b64 exec, -1
s_cmp_lg_u32 s2, 0
s_cbranch_scc1 L_noepoch
""")
a(f"""
L_noepoch:
s_waitcnt lgkmcnt(0)
s_barrier
""")
stamp(5)
ms = list(range(-6, 57, 2))
def uread(idx):
    a(f"ds_read_b128 {Q(32+4*(idx%16))}, v11 offset:{64*(56-ms[idx])}")
PRE = 8
for i in range(PRE): uread(i)
a("v_mov_b32 v8, 0")
outstanding = []
for i in range(PRE): outstanding.append(("u", i))
started = set()
pend = []
for i, m in enumerate(ms):
    pos = [k for k, o in enumerate(outstanding) if o == ("u", i)][0]
    left = len(outstanding) - pos - 1
    a(f"s_waitcnt lgkmcnt({min(left, 15)})")
    outstanding = outstanding[pos + 1:]
    cmin = max(0, -(-m // 8))
    cs = list(range(cmin, 8))
    for n, c in enumerate(cs):
        ti = 4 * c - m // 2
        acc = Q(96 + 4 * c)
        a(f"v_mfma_f32_16x16x32_bf16 {acc}, {Q(128+4*ti)}, {Q(32+4*(i%16))}, {acc if c in started else '0'}")
        started.add(c)
        if n == 0 and i + PRE < len(ms):
            uread(i + PRE); outstanding.append(("u", i + PRE))
        if n == min(2, len(cs) - 1) and pend:
            pc = pend.pop(0)
            a(f"v_add_u32 v8, 1, v8")
            a(f"ds_write_b128 v13, {Q(96+4*pc)} offset:{YPT*pc}")
            a(f"ds_write_b32 v14, v8")
            outstanding += [("w", pc), ("f", pc)]
    if m % 8 == 0 and m >= 0:
        pend.append(m // 8)
for pc in pend:
    a(f"v_add_u32 v8, 1, v8")
    a(f"ds_write_b128 v13, {Q(96+4*pc)} offset:{YPT*pc}")
    a(f"ds_write_b32 v14, v8")
stamp(6)
a(f"""
s_cmp_lg_u32 s3, 0
s_cbranch_scc1 L_fin
""")
def read_top2(t):
    a(f"""
v_mov_b32 v{t+2}, {KEYS}
ds_read_b128 {Q(t+4)}, v{t+2}
ds_read_b128 {Q(t+8)}, v{t+2} offset:16
s_waitcnt lgkmcnt(0)
v_mov_b32 v{t}, v{t+4}
v_mov_b32 v{t+1}, v{t+5}
""")
    for k in (6, 8, 10):
        a(f"""
v_min_u32 v{t+2}, v{t}, v{t+k}
v_max_u32 v{t}, v{t}, v{t+k}
v_max3_u32 v{t+1}, v{t+1}, v{t+k+1}, v{t+2}
""")
read_top2(16)
a(f"""
s_cmp_lg_u32 s2, 0
s_cbranch_scc1 L_noep2
v_mov_b32 v30, 0
v_mov_b32 v31, s7
s_mov_b64 exec, 1
global_store_dword v30, v31, s[44:45]
s_mov_b64 exec, -1
L_noep2:
v_and_b32 v18, 2, v1
v_cmp_ne_u32 vcc, 0, v18
v_cndmask_b32 v16, v16, v17, vcc
v_and_b32 v17, 0x7ff, v16
v_sub_u32 v17, 2047, v17
s_lshl_b32 s58, s6, 2
v_lshl_add_u32 v18, v17, 10, s58
v_and_b32 v19, 1, v1
v_lshl_add_u32 v18, v19, 1, v18
global_load_ushort v20, v18, s[16:17]
v_lshrrev_b32 v21, 8, v17
v_mul_u32_u24 v21, {YPT}, v21
v_bfe_u32 v22, v17, 2, 2
v_mul_u32_u24 v22, 20, v22
v_bfe_u32 v23, v17, 4, 4
v_add_u32 v22, v22, v23
v_lshl_add_u32 v21, v22, 4, v21
v_and_b32 v22, 3, v17
v_lshl_add_u32 v21, v22, 2, v21
v_mul_u32_u24 v22, {YPW}, v19
v_add_u32 v21, v21, v22
v_sub_u32 v22, 2047, v17
v_lshlrev_b32 v22, 1, v22
v_mul_u32_u24 v23, {UBS}, v19
v_add3_u32 v22, v22, v23, 0
v_add_u32 v22, {UB}, v22
ds_read_u16 v24, v22
v_mov_b32 v23, {FLAGS}
s_mov_b32 s11, 0
L_fwait:
ds_read_b128 {Q(32)}, v23
s_add_u32 s11, s11, 1
s_waitcnt lgkmcnt(0)
v_min3_u32 v32, v32, v33, v34
v_min_u32 v32, v32, v35
v_readfirstlane_b32 s58, v32
s_cmp_gt_u32 s11, 1000000
s_cbranch_scc1 L_fwait_done
s_cmp_lt_u32 s58, 8
s_cbranch_scc1 L_fwait
L_fwait_done:
ds_read_b32 v25, v21
ds_read_b32 v26, v21 offset:{2*YPW}
""")
a(f"""
v_ashrrev_i32 v27, 31, v16
v_not_b32 v27, v27
v_or_b32 v27, 0x80000000, v27
v_xor_b32 v27, v16, v27
v_and_b32 v27, s56, v27
v_mul_f32 v27, {fb(-LOG2E)}, v27
v_exp_f32 v27, v27
v_add_f32 v27, 1.0, v27
v_rcp_f32 v27, v27
v_cvt_pk_bf16_f32 v27, v27, v27
v_and_b32 v27, s56, v27
v_lshlrev_b32 v28, 4, v19
v_lshrrev_b32 v28, v28, s9
v_lshlrev_b32 v28, 16, v28
s_waitcnt lgkmcnt(0)
v_lshlrev_b32 v24, 16, v24
v_add_f32 v25, v25, v26
v_mul_f32 v28, v28, v24
v_cvt_pk_bf16_f32 v25, v25, v28
v_and_b32 v28, s56, v25
v_lshlrev_b32 v25, 16, v25
v_add_f32 v25, v25, v28
v_cvt_pk_bf16_f32 v25, v25, v25
v_and_b32 v25, s56, v25
""")
a(f"""
s_lshl_b32 s58, s6, 4
s_add_u32 s58, s58, {WS_FFN}
v_lshl_add_u32 v29, v1, 12, s58
v_min_u32 v30, 21, v1
v_add_u32 v30, 64, v30
v_lshl_add_u32 v30, v30, 12, s58
s_mov_b32 s11, 0
L_ppoll:
global_load_dwordx4 v[32:35], v29, s[44:45] sc1
global_load_dwordx4 v[36:39], v30, s[44:45] sc1
s_add_u32 s11, s11, 1
s_waitcnt vmcnt(0)
v_xor_b32 v40, s7, v35
v_xor_b32 v41, s7, v39
v_or_b32 v40, v40, v41
v_cmp_ne_u32 vcc, 0, v40
s_cmp_gt_u32 s11, {POLL_MAX}
s_cbranch_scc1 L_ppoll_done
s_cbranch_vccz L_ppoll_done
s_sleep 4
s_branch L_ppoll
L_ppoll_done:
s_mov_b32 s58, 0x04000c0c
s_mov_b32 s59, 0x0706000c
v_perm_b32 v35, v32, v33, s58
v_perm_b32 v39, v36, v37, s58
v_perm_b32 v35, v35, v34, s59
v_perm_b32 v39, v39, v38, s59
v_cmp_gt_u32 vcc, 22, v1
v_cndmask_b32 v36, 0, v36, vcc
v_cndmask_b32 v37, 0, v37, vcc
v_cndmask_b32 v38, 0, v38, vcc
v_cndmask_b32 v39, 0, v39, vcc
v_add_f32 v40, v32, v36
v_add_f32 v42, v33, v37
v_add_f32 v44, v34, v38
v_add_f32 v46, v35, v39
""")
reduce32([40, 42, 44, 46], [])
for r in (40, 42, 44, 46): a(f"v_mov_b32 v{r+1}, v{r}")
for r in (40, 42, 44, 46): a(f"v_permlane32_swap_b32 v{r}, v{r+1}")
for r in (40, 42, 44, 46): a(f"v_add_f32 v{r}, v{r}, v{r+1}")
a(f"""
v_cmp_ne_u32 vcc, 0, v19
v_cndmask_b32 v40, v40, v42, vcc
v_cndmask_b32 v44, v44, v46, vcc
v_and_b32 v41, 2, v1
v_cmp_ne_u32 vcc, 0, v41
v_cndmask_b32 v40, v40, v44, vcc
v_cvt_pk_bf16_f32 v40, v40, v40
v_and_b32 v40, s56, v40
v_mul_f32 v40, v40, v27
v_cvt_pk_bf16_f32 v40, v40, v40
v_and_b32 v40, s56, v40
v_add_f32 v40, v40, v24
v_cvt_pk_bf16_f32 v40, v40, v40
v_and_b32 v40, s56, v40
v_mul_f32 v41, {fb(-LOG2E)}, v40
v_exp_f32 v41, v41
v_add_f32 v41, 1.0, v41
v_rcp_f32 v41, v41
v_mul_f32 v40, v40, v41
v_cvt_pk_bf16_f32 v40, v40, v40
v_and_b32 v40, s56, v40
v_mul_f32 v40, v40, v25
v_cvt_pk_bf16_f32 v40, v40, v40
v_and_b32 v40, s56, v40
v_lshlrev_b32 v20, 16, v20
v_add_f32 v40, v40, v20
v_cvt_pk_bf16_f32 v40, v40, v40
s_mov_b64 exec, 15
buffer_store_short v40, v18, s[48:51], 0 offen
s_mov_b64 exec, -1
s_branch L_fin
""")
a.flush()
a(f"""
L_helper:
s_lshl_b32 s58, s47, 11
s_add_u32 s58, s58, {WS_STATS}
v_lshl_add_u32 v15, v1, 5, s58
v_add_u32 v9, 8192, v15
s_lshl_b32 s58, s47, 9
s_sub_u32 s58, {UB+4096-8-2048}, s58
v_lshlrev_b32 v10, 3, v1
v_sub_u32 v10, s58, v10
s_mov_b32 s11, 0
L_hpoll:
global_load_dwordx4 v[16:19], v15, s[44:45] sc1
global_load_dwordx4 v[20:23], v15, s[44:45] offset:16 sc1
global_load_dwordx4 v[24:27], v9, s[44:45] sc1
global_load_dwordx4 v[28:31], v9, s[44:45] offset:16 sc1
s_add_u32 s11, s11, 1
s_cmp_gt_u32 s11, 1
s_cbranch_scc1 L_hp2
s_waitcnt vmcnt(4)
""")
for t in range(8):
    a(f"v_lshlrev_b32 v{32+2*t}, 16, v{128+t}\n v_and_b32 v{33+2*t}, s56, v{128+t}")
a(f"""
L_hp2:
s_waitcnt vmcnt(0)
v_xor_b32 v48, s7, v19
v_xor_b32 v49, s7, v23
v_xor_b32 v50, s7, v27
v_xor_b32 v51, s7, v31
v_or_b32 v48, v48, v49
v_or3_b32 v48, v48, v50, v51
v_cmp_ne_u32 vcc, 0, v48
s_cmp_gt_u32 s11, {POLL_MAX}
s_cbranch_scc1 L_hpoll_done
s_cbranch_vccnz L_hpoll
L_hpoll_done:
""")
stamp(4)
def streg(t): return 16 + 4 * (t // 2) + (t & 1)
for t in range(8):
    a(f"v_and_b32 v{48+2*t}, s56, v{streg(t)}")
    a(f"v_rcp_f32 v{48+2*t}, v{48+2*t}")
for t in range(8):
    a(f"v_lshlrev_b32 v{64+2*t}, 16, v{streg(t)}")
for t in range(8):
    a(f"v_pk_add_f32 {P(64+2*t)}, {P(32+2*t)}, {P(64+2*t)} op_sel_hi:[1,0] neg_lo:[0,1] neg_hi:[0,1]")
for t in range(8):
    a(f"v_cvt_pk_bf16_f32 v{65+2*t}, v{64+2*t}, v{65+2*t}")
for t in range(8):
    a(f"v_lshlrev_b32 v{64+2*t}, 16, v{65+2*t}\n v_and_b32 v{65+2*t}, s56, v{65+2*t}")
for t in range(8):
    a(f"v_pk_mul_f32 {P(64+2*t)}, {P(64+2*t)}, {P(48+2*t)} op_sel_hi:[1,0]")
for k in range(2):
    for ch in range(2):
        b = 64 + 8 * k + ch
        d = 80 + 4 * k + 2 * ch
        a(f"v_cvt_pk_bf16_f32 v{d}, v{b+6}, v{b+4}")
        a(f"v_cvt_pk_bf16_f32 v{d+1}, v{b+2}, v{b}")
        a(f"ds_write_b64 v10, {P(d)} offset:{ch*UBS + (2048 if k == 0 else 0)}")
a(f"""
s_waitcnt lgkmcnt(0)
s_barrier
""")
stamp(5)
read_top2(16)
a(f"""
v_and_b32 v18, 0x7ff, v16
v_and_b32 v19, 0x7ff, v17
v_sub_u32 v18, 2047, v18
v_sub_u32 v19, 2047, v19
s_cmp_eq_u32 s61, 0
s_cbranch_scc1 L_noffn1
""")
for r in range(96, 112): a(f"v_mov_b32 v{r}, 0x3f803f80")
a(f"""
v_and_b32 v20, 1, v1
v_cmp_ne_u32 vcc, 0, v20
v_cndmask_b32 v20, v18, v19, vcc
v_lshrrev_b32 v21, 4, v1
v_lshlrev_b32 v21, 4, v21
s_lshl_b32 s58, s47, 8
v_add_u32 v21, s58, v21
v_lshl_add_u32 v21, v20, 10, v21
s_mov_b32 s58, 0x00030003
s_mov_b32 s59, 0x00030003
s_mov_b64 exec, s[58:59]
global_load_dwordx4 v[96:99], v21, s[16:17]
global_load_dwordx4 v[100:103], v21, s[16:17] offset:64
global_load_dwordx4 v[104:107], v21, s[16:17] offset:128
global_load_dwordx4 v[108:111], v21, s[16:17] offset:192
s_mov_b64 exec, -1
v_lshrrev_b32 v22, 1, v18
v_lshlrev_b32 v22, 4, v22
v_and_b32 v23, 1, v18
v_lshl_add_u32 v22, v23, 2, v22
v_lshrrev_b32 v24, 1, v19
v_lshlrev_b32 v24, 4, v24
v_and_b32 v23, 1, v19
v_lshl_add_u32 v24, v23, 2, v24
v_add_u32 v22, {WS_STATS}, v22
v_add_u32 v24, {WS_STATS}, v24
global_load_dword v112, v22, s[44:45] sc1
global_load_dword v113, v24, s[44:45] sc1
s_mov_b32 s58, 0x05040100
s_mov_b32 s59, 0x07060302
""")
for s in range(4):
    for k in range(4):
        r0 = 136 + 8 * s + 2 * k
        a(f"v_perm_b32 v{168+8*s+k}, v{r0+1}, v{r0}, s58")
        a(f"v_perm_b32 v{172+8*s+k}, v{r0+1}, v{r0}, s59")
for k in range(8):
    r0 = 200 + 2 * k
    a(f"v_perm_b32 v{216+k}, v{r0+1}, v{r0}, s58")
    a(f"v_perm_b32 v{224+k}, v{r0+1}, v{r0}, s59")
a("L_noffn1:")
a(f"""
s_lshl_b32 s58, s47, 8
v_lshl_add_u32 v20, v1, 2, s58
v_mov_b32 v23, 0x7fffffff
""")
for t in range(8):
    k, j = t // 4, t % 4
    a(f"""
v_add_u32 v21, {1024*k+j}, v20
v_add_u32 v{232+t}, {1024*j}, v{124+k}
v_cmp_eq_u32 vcc, v21, v18
v_cmp_eq_u32 s[58:59], v21, v19
s_or_b64 vcc, vcc, s[58:59]
v_cndmask_b32 v{232+t}, v{232+t}, v23, vcc
""")
for k in range(2):
    for ch in range(2):
        d = 80 + 4 * k + 2 * ch; b = 48 + 8 * k + 4 * ch
        a(f"v_and_b32 v{b}, s56, v{d+1}\n v_lshlrev_b32 v{b+1}, 16, v{d+1}\n v_and_b32 v{b+2}, s56, v{d}\n v_lshlrev_b32 v{b+3}, 16, v{d}")
a(f"""
s_lshl_b32 s58, s9, 16
s_and_b32 s59, s9, 0xffff0000
""")
for i in range(16): a(f"v_mul_f32 v{64+i}, {fb(-LOG2E)}, v{48+i}")
for i in range(16): a(f"v_exp_f32 v{64+i}, v{64+i}")
for i in range(16): a(f"v_add_f32 v{64+i}, 1.0, v{64+i}")
for i in range(16): a(f"v_rcp_f32 v{64+i}, v{64+i}")
for i in range(16): a(f"v_mul_f32 v{240+i}, {'s59' if (i>>2)&1 else 's58'}, v{48+i}")
for i in range(16): a(f"v_mul_f32 v{64+i}, v{64+i}, v{48+i}")
for base in (64, 240):
    for i in range(0, 16, 2):
        a(f"v_cvt_pk_bf16_f32 v{base+i+1}, v{base+i}, v{base+i+1}")
    for i in range(0, 16, 2):
        a(f"v_lshlrev_b32 v{base+i}, 16, v{base+i+1}\n v_and_b32 v{base+i+1}, s56, v{base+i+1}")
a(f"""
v_and_b32 v11, 3, v1
v_mul_u32_u24 v11, 20, v11
v_lshrrev_b32 v12, 2, v1
v_add_u32 v11, v11, v12
s_mul_i32 s58, s47, {YPT}
v_lshl_add_u32 v11, v11, 4, s58
v_mov_b32 v12, {FLAGS}
""")
def epilogue(k, lab):
    a(f"""
s_add_u32 s59, s47, {4*k+1}
s_mov_b32 s11, 0
{lab}:
ds_read_b128 {Q(16)}, v12
s_add_u32 s11, s11, 1
s_waitcnt lgkmcnt(0)
v_min3_u32 v16, v16, v17, v18
v_min_u32 v16, v16, v19
v_readfirstlane_b32 s58, v16
s_cmp_gt_u32 s11, 1000000
s_cbranch_scc1 {lab}_done
s_cmp_lt_u32 s58, s59
s_cbranch_scc1 {lab}
{lab}_done:
""")
    for w in range(4):
        a(f"ds_read_b128 {Q(16+4*w)}, v11 offset:{w*YPW + 4*k*YPT}")
    a("s_waitcnt lgkmcnt(0)")
    def rnd4():
        for i in range(0, 8, 2): a(f"v_cvt_pk_bf16_f32 v{17+i}, v{16+i}, v{17+i}")
        for i in range(0, 8, 2): a(f"v_lshlrev_b32 v{16+i}, 16, v{17+i}\n v_and_b32 v{17+i}, s56, v{17+i}")
    for i in range(0, 8, 2): a(f"v_pk_add_f32 {P(16+i)}, {P(16+i)}, {P(24+i)}")
    rnd4()
    for i in range(0, 8, 2): a(f"v_pk_add_f32 {P(16+i)}, {P(16+i)}, {P(240+8*k+i)}")
    rnd4()
    for i in range(0, 8, 2): a(f"v_pk_mul_f32 {P(16+i)}, {P(16+i)}, {P(64+8*k+i)}")
    rnd4()
    for j in range(4):
        t = 4 * k + j
        a(f"v_add_f32 v{16+j}, v{16+j}, v{32+2*t}\n v_add_f32 v{20+j}, v{20+j}, v{33+2*t}")
    for j in range(4):
        a(f"v_cvt_pk_bf16_f32 v{24+j}, v{16+j}, v{20+j}")
        a(f"buffer_store_dword v{24+j}, v{232+4*k+j}, s[48:51], 0 offen")
epilogue(0, "L_e0")
stamp(6)
a(f"""
s_cmp_eq_u32 s61, 0
s_cbranch_scc1 L_noffn2
s_waitcnt vmcnt(4)
""")
for s in range(4):
    a(f"v_mfma_f32_16x16x32_bf16 {Q(116)}, {Q(96+4*s)}, {Q(168+8*s)}, {Q(116) if s else '0'}")
    a(f"v_mfma_f32_16x16x32_bf16 {Q(120)}, {Q(96+4*s)}, {Q(172+8*s)}, {Q(120) if s else '0'}")
a(f"""
v_lshlrev_b32 v114, 16, v112
v_lshlrev_b32 v115, 16, v113
v_and_b32 v16, 7, v1
v_lshlrev_b32 v16, 6, v16
v_and_b32 v17, 8, v1
v_lshl_add_u32 v16, v17, 2, v16
s_lshl_b32 s58, s47, 2
s_add_u32 s58, s58, {RED}
v_add_u32 v16, s58, v16
s_add_u32 s59, s58, {FSYNC-RED}
v_mov_b32 v17, s59
v_mov_b32 v18, 1
v_fma_f32 v116, -v114, v118, v116
v_fma_f32 v117, -v115, v118, v117
v_fma_f32 v120, -v114, v122, v120
v_fma_f32 v121, -v115, v122, v121
s_mov_b64 exec, 0xffff
ds_write_b32 v16, v116
ds_write_b32 v16, v117 offset:512
ds_write_b32 v16, v120 offset:16
ds_write_b32 v16, v121 offset:528
s_mov_b64 exec, 1
ds_write_b32 v17, v18
s_mov_b64 exec, -1
v_mov_b32 v17, {FSYNC}
v_and_b32 v16, 15, v1
v_lshlrev_b32 v16, 6, v16
v_add_u32 v16, {RED}, v16
v_and_b32 v19, 8, v1
v_cmp_ne_u32 vcc, 0, v19
v_cndmask_b32 v19, v112, v113, vcc
v_and_b32 v19, s56, v19
v_rcp_f32 v19, v19
s_mov_b32 s11, 0
L_fs:
ds_read_b128 {Q(20)}, v17
s_add_u32 s11, s11, 1
s_waitcnt lgkmcnt(0)
v_min3_u32 v20, v20, v21, v22
v_min_u32 v20, v20, v23
v_readfirstlane_b32 s58, v20
s_cmp_gt_u32 s11, 1000000
s_cbranch_scc1 L_fs_done
s_cmp_eq_u32 s58, 0
s_cbranch_scc1 L_fs
L_fs_done:
ds_read_b128 {Q(96)}, v16
ds_read_b128 {Q(100)}, v16 offset:16
ds_read_b128 {Q(104)}, v16 offset:32
ds_read_b128 {Q(108)}, v16 offset:48
s_waitcnt lgkmcnt(0)
""")
for q in range(4):
    b = 96 + 4 * q
    a(f"v_pk_add_f32 {P(b)}, {P(b)}, {P(b+2)}")
for q in range(4):
    b = 96 + 4 * q
    a(f"v_add_f32 v{b}, v{b}, v{b+1}")
for q in range(4):
    a(f"v_mul_f32 v{96+4*q}, v{96+4*q}, v19")
a(f"""
v_cvt_pk_bf16_f32 v21, v96, v100
v_cvt_pk_bf16_f32 v23, v104, v108
v_lshlrev_b32 v20, 16, v21
v_and_b32 v21, s56, v21
v_lshlrev_b32 v22, 16, v23
v_and_b32 v23, s56, v23
v_mul_f32 v24, {fb(-LOG2E)}, v20
v_mul_f32 v25, {fb(-LOG2E)}, v21
v_exp_f32 v24, v24
v_exp_f32 v25, v25
v_add_f32 v24, 1.0, v24
v_add_f32 v25, 1.0, v25
v_rcp_f32 v24, v24
v_rcp_f32 v25, v25
v_mul_f32 v20, v20, v24
v_mul_f32 v21, v21, v25
v_cvt_pk_bf16_f32 v21, v20, v21
v_lshlrev_b32 v20, 16, v21
v_and_b32 v21, s56, v21
v_mul_f32 v20, v20, v22
v_mul_f32 v21, v21, v23
v_cvt_pk_bf16_f32 v20, v20, v21
""")
for i in range(16): a(f"v_readlane_b32 s{80+i}, v20, {i}")
for p in range(8):
    for tok in range(2):
        for ch in range(2):
            acc = 24 + 2 * tok + ch
            a(f"v_dot2_f32_bf16 v{acc}, v{216+8*ch+p}, s{80+8*tok+p}, {'v%d' % acc if p else '0'}")
a(f"""
s_mov_b32 s58, 0x07060503
s_mov_b32 s59, 0x07060502
s_lshl_b32 s11, s60, 12
s_add_u32 s11, s11, {WS_FFN}
v_subrev_u32 v16, 256, v0
v_lshl_add_u32 v16, v16, 4, s11
v_perm_b32 v24, v24, v27, s58
s_mov_b32 s58, 0x07060501
v_perm_b32 v25, v25, v27, s59
v_perm_b32 v26, v26, v27, s58
v_mov_b32 v27, s7
global_store_dwordx4 v16, v[24:27], s[44:45] sc1
s_nop 1
L_noffn2:
""")
stamp(7)
epilogue(1, "L_e1")
a.flush()
a("L_fin:")
if STAMPS:
    a("s_waitcnt vmcnt(0)")
    a("s_memrealtime s[96:97]\n s_waitcnt lgkmcnt(0)")
    a(f"""
s_lshl_b32 s11, s2, 3
s_add_u32 s11, s11, s3
s_lshl_b32 s11, s11, 7
s_add_u32 s11, s11, {WS_STAMP}
v_mov_b32 v2, s11
s_mov_b64 exec, 1
""")
    if DBGST:
        a("""
s_and_b32 s11, s3, 3
s_cmp_lg_u32 s11, 0
s_cbranch_scc1 L_end
s_lshl_b32 s11, s3, 3
v_mov_b32 v2, s11
v_mov_b32 v6, 0
s_not_b32 s64, s64
v_mov_b32 v4, s64
global_atomic_umax v6, v4, s[42:43]
s_cmp_eq_u32 s3, 0
s_cselect_b32 s66, 0, s66
s_cselect_b32 s78, 0, s78
""")
        for k in range(1, 9):
            src = 64 + 2 * k if k < 8 else 96
            a(f"v_mov_b32 v4, s{src}\n global_atomic_umax v2, v4, s[42:43] offset:{4*(k-1)}\n s_nop 1")
    else:
      for k in range(9):
        src = 64 + 2 * k if k < 8 else 96
        a(f"v_mov_b32 v4, s{src}\n v_mov_b32 v5, s{src+1}\n global_store_dwordx2 v2, v[4:5], s[44:45] offset:{8*k}\n s_nop 1")
a("L_end:")
a("s_endpgm")
a.raw(".p2align 6")
a.raw("L_rowtab:")
for part in range(4):
    vals = []
    for x in range(16):
        o1 = ROW[(part, rnd(part, x))] * ROWB; o2 = ROW[(part + 4, rnd(part + 4, x))] * ROWB
        vals.append("0x%08x" % (o1 | (o2 << 16)))
    a.raw(".long " + ", ".join(vals))
a.raw("L_codeend:")
a.raw(f""".section .rodata,"a"
.p2align 6
.amdhsa_kernel {NAME}_kernel
  .amdhsa_next_free_vgpr 256
  .amdhsa_next_free_sgpr 102
  .amdhsa_accum_offset 256
  .amdhsa_group_segment_fixed_size 0
  .amdhsa_kernarg_size 120
  .amdhsa_user_sgpr_count 2
  .amdhsa_user_sgpr_kernarg_segment_ptr 1
  .amdhsa_system_sgpr_workgroup_id_x 1
.end_amdhsa_kernel""")
open(OUT, "w").write(a.text())
print("wrote", OUT, "instrs", a.nins, "lds", LDS_TOTAL)
```
